```python
import torch

def _softmax(x, axis=-1):
    return torch.softmax(x, dim=axis)

def _gelu(x):
    return torch.nn.functional.gelu(x, approximate='tanh')

def _silu(x):
    return torch.nn.functional.silu(x)

def _sigmoid(x):
    return torch.sigmoid(x)

def _layernorm(x, axis=-1, eps=1e-05):
    m = x.mean(dim=axis, keepdim=True)
    v = x.var(dim=axis, keepdim=True, unbiased=False)
    return (x - m) / torch.sqrt(v + eps)

def _scatter_add(tgt, idx, src, axis=0):
    return tgt.clone().index_add_(axis, idx, src)

def _segment_sum(src, seg, n):
    out = torch.zeros((n,) + src.shape[1:], dtype=src.dtype)
    return out.index_add_(0, seg, src)

def _pad(x, pw):
    flat = tuple((v for pair in reversed(pw) for v in pair))
    return torch.nn.functional.pad(x, flat)
kernel_name = 'standalone__video_video_swin__vision'

def setup_inputs():

    _w = lambda a: (lambda t: t.to(torch.bfloat16) if t.is_floating_point() else t)(torch.as_tensor(a))
    T = 4
    H = W = 224 // 8 * 8
    C, win = (96, 8)
    return {'x': _w((lambda *s: torch.randn(*s, dtype=torch.bfloat16) * 0.1)(1, T, H, W, C)), 'wqkv_t': _w((lambda *s: torch.randn(*s, dtype=torch.bfloat16) * 0.1)(C, 3 * C)), 'wo_t': _w((lambda *s: torch.randn(*s, dtype=torch.bfloat16) * 0.1)(C, C)), 'wqkv_s': _w((lambda *s: torch.randn(*s, dtype=torch.bfloat16) * 0.1)(C, 3 * C)), 'wo_s': _w((lambda *s: torch.randn(*s, dtype=torch.bfloat16) * 0.8)(C, C))}

def reference(x, wqkv_t, wo_t, wqkv_s, wo_s):
    B, T, H, W, C = x.shape
    win = 8
    scale = C ** (-0.5)
    h = _layernorm(x, axis=-1)
    ht = (lambda x, *d: x.permute(*d))(h, 0, 2, 3, 1, 4).reshape(B * H * W, T, C)
    qkv = ht @ wqkv_t
    q, k, v = (qkv[..., :C].clone(), qkv[..., C:2 * C].clone(), qkv[..., 2 * C:].clone())
    p = _softmax(torch.einsum('btc,bsc->bts', q, k) * scale, axis=-1)
    ot = torch.einsum('bts,bsc->btc', p, v) @ wo_t
    ot = (lambda x, *d: x.permute(*d))(ot.reshape(B, H, W, T, C), 0, 3, 1, 2, 4)
    x = x + ot
    h = _layernorm(x, axis=-1)
    nh, nw = (H // win, W // win)
    hs = h.reshape(B * T, nh, win, nw, win, C)
    hw = (lambda x, *d: x.permute(*d))(hs, 0, 1, 3, 2, 4, 5).reshape(B * T * nh * nw, win * win, C)
    qkv = hw @ wqkv_s
    q, k, v = (qkv[..., :C].clone(), qkv[..., C:2 * C].clone(), qkv[..., 2 * C:].clone())
    p = _softmax(torch.einsum('bqc,bkc->bqk', q, k) * scale, axis=-1)
    os = torch.einsum('bqk,bkc->bqc', p, v) @ wo_s
    os = (lambda x, *d: x.permute(*d))(os.reshape(B * T, nh, nw, win, win, C), 0, 1, 3, 2, 4, 5)
    os = os.reshape(B, T, H, W, C)
    return x + os
```

```python
def vr(a, n=1):
    return f"v{a}" if n == 1 else f"v[{a}:{a+n-1}]"
def sr(a, n=1):
    return f"s{a}" if n == 1 else f"s[{a}:{a+n-1}]"
def R(a, n=1):
    return list(range(a, a+n))

class K:
    def __init__(self):
        self.out = []
        self.pos = 0
        self.valu_w = {}
        self.trans_w = {}
        self.dot_w = {}
        self.mfma_w = {}
        self.mfma_c = {}
        self.store_r = {}
        self.sgpr_w = {}
        self.lgkm = []
        self.vm = []
        self.counts = {}

    def raw(self, text, ws=1):
        self.out.append("  " + text)
        self.pos += ws
    def comment(self, t):
        self.out.append("  ; " + t)
    def label(self, t):
        self.out.append(t + ":")
    def nop(self, n):
        while n > 0:
            k = min(n, 16)
            self.raw(f"s_nop {k-1}", ws=k)
            self.counts['nop'] = self.counts.get('nop', 0) + 1
            n -= k
    def _need(self, prodpos, ws):
        have = self.pos - prodpos - 1
        if have < ws:
            self.nop(ws - have)
    def _wait_mem(self, regs):
        regs = set(regs)
        idx = -1
        for i, d in enumerate(self.lgkm):
            if d & regs: idx = i
        need_l = None
        if idx >= 0:
            n = len(self.lgkm) - 1 - idx
            need_l = min(n, 15)
            self.lgkm = self.lgkm[len(self.lgkm)-need_l:] if need_l > 0 else []
        idx = -1
        for i, d in enumerate(self.vm):
            if d & regs: idx = i
        need_v = None
        if idx >= 0:
            n = len(self.vm) - 1 - idx
            need_v = min(n, 63)
            self.vm = self.vm[len(self.vm)-need_v:] if need_v > 0 else []
        if need_l is not None or need_v is not None:
            t = "s_waitcnt"
            if need_v is not None: t += f" vmcnt({need_v})"
            if need_l is not None: t += f" lgkmcnt({need_l})"
            self.raw(t)
    def wait_all_lgkm(self):
        self.raw("s_waitcnt lgkmcnt(0)"); self.lgkm = []
    def wait_all_vm(self):
        self.raw("s_waitcnt vmcnt(0)"); self.vm = []
    def barrier(self):
        self.raw("s_barrier")

    def _mfma_d_hazard(self, regs, ws=12):
        for r in regs:
            if r in self.mfma_w:
                self._need(self.mfma_w[r][0], ws)

    def valu(self, text, w=(), r=(), sw=(), sr_=(), kind="valu"):
        w = list(w); r = list(r)
        self._wait_mem(w + r)
        self._mfma_d_hazard(w + r)
        for x in w:
            if x in self.mfma_c: self._need(self.mfma_c[x], 7)
            if x in self.store_r: self._need(self.store_r[x], 2)
        for x in r:
            if kind != "trans" and x in self.trans_w: self._need(self.trans_w[x], 1)
            if x in self.trans_w and kind == "trans": pass
            if x in self.dot_w and kind != "dotc": self._need(self.dot_w[x], 3)
            if kind == "permlane" and x in self.valu_w: self._need(self.valu_w[x], 2)
            if kind == "readlane" and x in self.valu_w: self._need(self.valu_w[x], 1)
        for x in w:
            if x in self.dot_w and kind != "dotc": self._need(self.dot_w[x], 3)
        for s in sr_:
            if s in self.sgpr_w: self._need(self.sgpr_w[s], 2)
        self.raw(text)
        p = self.pos - 1
        for x in w:
            self.valu_w[x] = p
            self.trans_w.pop(x, None); self.dot_w.pop(x, None); self.mfma_w.pop(x, None)
            if kind == "trans": self.trans_w[x] = p
            if kind == "dotc": self.dot_w[x] = p
        for s in sw: self.sgpr_w[s] = p
        self.counts[kind] = self.counts.get(kind, 0) + 1

    def mfma(self, d, a, b, c=None):
        D = R(d, 16); A = R(a, 4); B = R(b, 4); C = R(c, 16) if c is not None else []
        self._wait_mem(D + A + B + C)
        for x in A + B + C:
            if x in self.valu_w: self._need(self.valu_w[x], 2)
            if x in self.dot_w: self._need(self.dot_w[x], 3)
        for x in A + B:
            if x in self.mfma_w: self._need(self.mfma_w[x][0], 12)
        for x in C:
            if x in self.mfma_w:
                if self.mfma_w[x][1] != (c, 16): self._need(self.mfma_w[x][0], 10)
        cs = "0" if c is None else vr(c, 16)
        self.raw(f"v_mfma_f32_32x32x16_bf16 {vr(d,16)}, {vr(a,4)}, {vr(b,4)}, {cs}")
        p = self.pos - 1
        for x in D:
            self.mfma_w[x] = (p, (d, 16))
            self.valu_w.pop(x, None); self.trans_w.pop(x, None); self.dot_w.pop(x, None)
        for x in C: self.mfma_c[x] = p
        self.counts['mfma'] = self.counts.get('mfma', 0) + 1

    def ds_read(self, d, n, addr, off):
        D = R(d, n)
        self._wait_mem(D + [addr])
        self._mfma_d_hazard(D + [addr])
        op = {1: "ds_read_b32", 2: "ds_read_b64", 4: "ds_read_b128"}[n]
        self.raw(f"{op} {vr(d,n)}, {vr(addr)} offset:{off}")
        self.lgkm.append(set(D))
        for x in D:
            self.valu_w.pop(x, None); self.mfma_w.pop(x, None); self.trans_w.pop(x, None); self.dot_w.pop(x, None)
        self.counts['ds'] = self.counts.get('ds', 0) + 1
    def ds_write(self, s, n, addr, off):
        S = R(s, n)
        self._wait_mem(S + [addr])
        self._mfma_d_hazard(S + [addr])
        for x in S + [addr]:
            if x in self.dot_w: self._need(self.dot_w[x], 3)
        op = {1: "ds_write_b32", 2: "ds_write_b64", 4: "ds_write_b128"}[n]
        self.raw(f"{op} {vr(addr)}, {vr(s,n)} offset:{off}")
        self.lgkm.append(set())
        self.counts['ds'] = self.counts.get('ds', 0) + 1
    def buf_load(self, d, n, voff, srd, soff, off):
        D = R(d, n)
        self._wait_mem(D + [voff])
        self._mfma_d_hazard(D + [voff])
        for s in R(srd, 4) + ([soff] if isinstance(soff, int) else []):
            if s in self.sgpr_w: self._need(self.sgpr_w[s], 5)
        op = {1: "buffer_load_dword", 2: "buffer_load_dwordx2", 4: "buffer_load_dwordx4"}[n]
        so = sr(soff) if isinstance(soff, int) else "0"
        self.raw(f"{op} {vr(d,n)}, {vr(voff)}, {sr(srd,4)}, {so} offen offset:{off}")
        self.vm.append(set(D))
        for x in D:
            self.valu_w.pop(x, None); self.mfma_w.pop(x, None); self.trans_w.pop(x, None); self.dot_w.pop(x, None)
        self.counts['vmem'] = self.counts.get('vmem', 0) + 1
    def buf_store(self, s, n, voff, srd, soff, off):
        S = R(s, n)
        self._wait_mem(S + [voff])
        self._mfma_d_hazard(S + [voff])
        for x in R(srd, 4) + ([soff] if isinstance(soff, int) else []):
            if x in self.sgpr_w: self._need(self.sgpr_w[x], 5)
        op = {1: "buffer_store_dword", 2: "buffer_store_dwordx2", 4: "buffer_store_dwordx4"}[n]
        so = sr(soff) if isinstance(soff, int) else "0"
        self.raw(f"{op} {vr(s,n)}, {vr(voff)}, {sr(srd,4)}, {so} offen offset:{off}")
        self.vm.append(set())
        p = self.pos - 1
        if n >= 3:
            for x in S: self.store_r[x] = p
        self.counts['vmem'] = self.counts.get('vmem', 0) + 1
    def salu(self, text):
        self.raw(text)
        self.counts['salu'] = self.counts.get('salu', 0) + 1

    def v2(self, op, d, a, b, kind="valu"):
        rs = [x for x in (a, b) if isinstance(x, int)]
        fa = vr(a) if isinstance(a, int) else a
        fb = vr(b) if isinstance(b, int) else b
        self.valu(f"{op} {vr(d)}, {fa}, {fb}", w=[d], r=rs, kind=kind)
    def v1(self, op, d, a, kind="valu"):
        rs = [a] if isinstance(a, int) else []
        fa = vr(a) if isinstance(a, int) else a
        self.valu(f"{op} {vr(d)}, {fa}", w=[d], r=rs, kind=kind)
    def v3(self, op, d, a, b, c, kind="valu"):
        rs = [x for x in (a, b, c) if isinstance(x, int)]
        f = [vr(x) if isinstance(x, int) else x for x in (a, b, c)]
        self.valu(f"{op} {vr(d)}, {f[0]}, {f[1]}, {f[2]}", w=[d], r=rs, kind=kind)
    def cndmask(self, d, f, t, m):
        rs = [x for x in (f, t) if isinstance(x, int)]
        ff = vr(f) if isinstance(f, int) else f
        ft = vr(t) if isinstance(t, int) else t
        self.valu(f"v_cndmask_b32 {vr(d)}, {ff}, {ft}, {sr(m,2)}", w=[d], r=rs, sr_=[m, m+1])
    def pack(self, d, lo, hi):
        self.valu(f"v_cvt_pk_bf16_f32 {vr(d)}, {vr(lo)}, {vr(hi)}", w=[d], r=[lo, hi])
    def swap32(self, a, b):
        self.valu(f"v_permlane32_swap_b32 {vr(a)}, {vr(b)}", w=[a, b], r=[a, b], kind="permlane")
    def text(self):
        return "\n".join(self.out) + "\n"
```

```python
import sys, math
sys.path.insert(0, "gen")
from asmlib import *

NAME = "standalone__video_video_swin__vision"
T_STRIDE = 9633792
ROW = 43008
X_BYTES = 38535168
WS_STAGE = 36864
LDS_W = 0
LDS_X = 32768
LDS_TOTAL = 81920

def pi0(r):
    return (r & ~12) | ((r & 4) << 1) | ((r & 8) >> 1)

HEADER = """; Kernarg layout for this problem (64 bytes, ptrs only, base s[0:1]):
;   offset   0: d_in[0] x  shape=(1, 4, 224, 224, 96) dtype=bfloat16 strides=(38535168, 9633792, 43008, 192, 2) contiguous=True
;   offset   8: d_in[1] wqkv_t  shape=(96, 288) dtype=bfloat16 strides=(576, 2) contiguous=True
;   offset  16: d_in[2] wo_t  shape=(96, 96) dtype=bfloat16 strides=(192, 2) contiguous=True
;   offset  24: d_in[3] wqkv_s  shape=(96, 288) dtype=bfloat16 strides=(576, 2) contiguous=True
;   offset  32: d_in[4] wo_s  shape=(96, 96) dtype=bfloat16 strides=(192, 2) contiguous=True
;   offset  40: d_out     shape=(1, 4, 224, 224, 96) dtype=bfloat16 (2 bytes/elem)
;   offset  48: d_debug   256 bytes
;   offset  56: d_ws      268435456 bytes workspace
; Two launches: (1) fold weights  M = scale*log2e*Wq*Wk^T and Wvo = Wv*Wo into MFMA fragment order in d_ws,
;               (2) fused temporal + spatial window attention, one workgroup per 8x8 window (all 4 frames).
; (generated by gen/gen.py)
; @launch kernel=fold_kernel grid=(36,1,1) block=(64,1,1) lds=0
; @launch kernel=%s_kernel grid=(784,1,1) block=(256,1,1) lds=%d
.amdgcn_target "amdgcn-amd-amdhsa--gfx950"
.text
""" % (NAME, LDS_TOTAL)

def kd(name, nv, ns):
    return f""".amdhsa_kernel {name}
  .amdhsa_next_free_vgpr {nv}
  .amdhsa_next_free_sgpr {ns}
  .amdhsa_accum_offset {(nv+3)//4*4}
  .amdhsa_group_segment_fixed_size 0
  .amdhsa_kernarg_size 64
  .amdhsa_user_sgpr_count 2
  .amdhsa_user_sgpr_kernarg_segment_ptr 1
  .amdhsa_system_sgpr_workgroup_id_x 1
.end_amdhsa_kernel
"""

def gen_fold():
    k = K()
    k.out.append(".globl fold_kernel\n.p2align 8\n.type fold_kernel,@function\nfold_kernel:")
    k.salu("s_cmp_ge_u32 s2, 36")
    k.salu("s_cbranch_scc1 L_fold_done")
    k.salu("s_load_dwordx4 s[4:7], s[0:1], 8")
    k.salu("s_load_dwordx4 s[8:11], s[0:1], 24")
    k.salu("s_load_dwordx2 s[12:13], s[0:1], 56")
    k.salu("s_mul_i32 s14, s2, 29")
    k.salu("s_lshr_b32 s14, s14, 8")
    k.salu("s_mul_i32 s15, s14, 9")
    k.salu("s_sub_u32 s15, s2, s15")
    k.salu("s_mul_i32 s16, s15, 86")
    k.salu("s_lshr_b32 s16, s16, 8")
    k.salu("s_mul_i32 s17, s16, 3")
    k.salu("s_sub_u32 s17, s15, s17")
    k.salu("s_and_b32 s18, s14, 1")
    k.salu("s_lshr_b32 s19, s14, 1")
    k.v2("v_and_b32", 1, "31", 0)
    k.v2("v_lshrrev_b32", 2, "5", 0)
    k.v2("v_and_b32", 3, "19", 1)
    k.v2("v_and_b32", 4, "4", 1)
    k.v2("v_lshlrev_b32", 4, "1", 4)
    k.v2("v_or_b32", 3, 3, 4)
    k.v2("v_and_b32", 4, "8", 1)
    k.v2("v_lshrrev_b32", 4, "1", 4)
    k.v2("v_or_b32", 3, 3, 4)
    k.raw("s_waitcnt lgkmcnt(0)")
    k.salu("s_cmp_eq_u32 s19, 0")
    k.salu("s_cselect_b32 s20, s4, s8")
    k.salu("s_cselect_b32 s21, s5, s9")
    k.salu("s_cselect_b32 s22, s6, s10")
    k.salu("s_cselect_b32 s23, s7, s11")
    k.salu("s_lshl_b32 s24, s16, 5")
    k.v2("v_add_u32", 5, "s24", 3)
    k.salu("s_movk_i32 s25, 576")
    k.valu("v_mul_lo_u32 v5, v5, s25", w=[5], r=[5])
    k.v2("v_lshlrev_b32", 6, "4", 2)
    k.v2("v_add_u32", 5, 5, 6)
    k.salu("s_mul_i32 s26, s18, 384")
    k.v2("v_add_u32", 5, "s26", 5)
    for s in range(6):
        k.raw(f"global_load_dwordx4 v[{16+4*s}:{19+4*s}], v5, s[20:21] offset:{32*s}")
    k.salu("s_lshl_b32 s24, s17, 5")
    k.v2("v_add_u32", 7, "s24", 3)
    k.salu("s_cmp_eq_u32 s18, 0")
    k.salu("s_cbranch_scc0 L_fold_wo")
    k.valu("v_mul_lo_u32 v8, v7, s25", w=[8], r=[7])
    k.v2("v_add_u32", 8, 8, 6)
    for s in range(6):
        k.raw(f"global_load_dwordx4 v[{40+4*s}:{43+4*s}], v8, s[20:21] offset:{192+32*s}")
    k.salu("s_branch L_fold_mm")
    k.label("L_fold_wo")
    k.v2("v_lshlrev_b32", 8, "1", 7)
    k.salu("s_movk_i32 s27, 1536")
    k.valu("v_mul_lo_u32 v9, v2, s27", w=[9], r=[2])
    k.v2("v_add_u32", 8, 8, 9)
    for s in range(6):
        if s > 0:
            k.v2("v_add_u32", 8, "0xc00", 8)
        for j in range(8):
            k.raw(f"global_load_ushort v{96+8*s+j}, v8, s[22:23] offset:{192*j}")
    k.raw("s_waitcnt vmcnt(0)")
    for i in range(24):
        k.raw(f"v_lshl_or_b32 v{40+i}, v{96+2*i+1}, 16, v{96+2*i}")
    k.nop(2)
    k.label("L_fold_mm")
    k.raw("s_waitcnt vmcnt(0)")
    for s in range(6):
        k.raw(f"v_mfma_f32_32x32x16_bf16 v[64:79], v[{16+4*s}:{19+4*s}], v[{40+4*s}:{43+4*s}], " + ("0" if s == 0 else "v[64:79]"))
    c0 = (96 ** -0.5) * math.log2(math.e)
    import struct
    c0bits = struct.unpack("<I", struct.pack("<f", c0))[0]
    k.salu(f"s_mov_b32 s28, {c0bits:#x}")
    k.salu("s_cmp_eq_u32 s18, 0")
    k.salu("s_cselect_b32 s28, s28, 1.0")
    k.salu("s_mul_i32 s29, s19, 36864")
    k.salu("s_mul_i32 s30, s18, 18432")
    k.salu("s_add_u32 s29, s29, s30")
    k.salu("s_mul_i32 s30, s17, 6144")
    k.salu("s_add_u32 s29, s29, s30")
    k.salu("s_lshl_b32 s30, s16, 11")
    k.salu("s_add_u32 s29, s29, s30")
    k.v2("v_lshlrev_b32", 10, "4", 0)
    k.v2("v_add_u32", 10, "s29", 10)
    k.nop(16)
    for i in range(16):
        k.v2("v_mul_f32", 64+i, "s28", 64+i)
    for i in range(8):
        k.pack(80+i, 64+2*i, 65+2*i)
    k.raw("global_store_dwordx4 v10, v[80:83], s[12:13]")
    k.raw("global_store_dwordx4 v10, v[84:87], s[12:13] offset:1024")
    k.label("L_fold_done")
    k.raw("s_endpgm")
    return k.text()

B0, B1, B2 = 16, 64, 112
ACC = 160
WF = 224
PT = 240
V_LANE, V_XOFF, V_XW, V_XR, V_OOFF, V_WRD, V_WG = 1, 2, 3, 4, 5, 6, 7
T0 = 8
SRD_X, SRD_O, SRD_W = 12, 16, 20
S_WAVE, S_BASE = 24, 27
S_ONES = 30
S_M1, S_M2, S_M3 = 32, 34, 36
S_MV = [38, 40, 42, 44]
S_SO0, S_SO1 = 46, 47
S_TMP = 48

def layernorm(k, xp, h):
    s, q, t, r, nb = T0, T0+1, T0+2, T0+3, T0+4
    for i in range(24):
        if i == 0:
            k.valu(f"v_dot2_f32_bf16 {vr(s)}, {vr(xp)}, s{S_ONES}, 0", w=[s], r=[xp], kind="dotc")
            k.valu(f"v_dot2_f32_bf16 {vr(q)}, {vr(xp)}, {vr(xp)}, 0", w=[q], r=[xp], kind="dotc")
        else:
            k.valu(f"v_dot2_f32_bf16 {vr(s)}, {vr(xp+i)}, s{S_ONES}, {vr(s)}", w=[s], r=[xp+i, s], kind="dotc")
            k.valu(f"v_dot2_f32_bf16 {vr(q)}, {vr(xp+i)}, {vr(xp+i)}, {vr(q)}", w=[q], r=[xp+i, q], kind="dotc")
    k.swap32(s, q)
    k.v2("v_add_f32", s, s, q)
    k.v1("v_mov_b32", q, s)
    k.swap32(s, q)
    k.v2("v_mul_f32", s, "0x3c2aaaab", s)
    k.v2("v_mul_f32", q, "0x3c2aaaab", q)
    k.v3("v_fma_f32", q, "-"+vr(s), s, q) if False else k.valu(f"v_fma_f32 {vr(q)}, -{vr(s)}, {vr(s)}, {vr(q)}", w=[q], r=[s, q])
    k.v2("v_max_f32", q, "0", q)
    k.v2("v_add_f32", q, "0x3727c5ac", q)
    k.v1("v_rsq_f32", r, q, kind="trans")
    k.valu(f"v_mul_f32 {vr(nb)}, -{vr(s)}, {vr(r)}", w=[nb], r=[s, r])
    lo, hi = T0+5, T0+6
    for i in range(24):
        lo = T0+5 + (i & 1); hi = T0+0 + (i & 1)
        k.v2("v_lshlrev_b32", lo, "16", xp+i)
        k.v2("v_and_b32", hi, "0xffff0000", xp+i)
        k.v3("v_fma_f32", lo, lo, r, nb)
        k.v3("v_fma_f32", hi, hi, r, nb)
        k.pack(h+i, lo, hi)

class WFrag:
    def __init__(self, k, direct):
        self.k = k; self.direct = direct; self.slot = 0; self.loaded = {}
    def prefetch(self, f):
        if f < 4 or f >= 36 or f in self.loaded: return
        reg = WF + 4*self.slot; self.slot = (self.slot + 1) % 4
        self.k.ds_read(reg, 4, V_WRD, LDS_W + (f-4)*1024)
        self.loaded[f] = reg
    def get(self, f):
        if f < 4: return self.direct + 4*f
        self.prefetch(f)
        return self.loaded[f]

def gemm(k, wf, mat, h, dst, accs, as_a, extra=None):
    pend = []
    extra = list(extra or [])
    for ct in range(3):
        acc = accs[ct]
        if ct > 0 and accs[ct] == accs[ct-1]:
            while pend: pend.pop(0)()
        for s in range(6):
            f = mat*18 + ct*6 + s
            wf.prefetch(f+1); wf.prefetch(f+2)
            w = wf.get(f)
            for j in range(2):
                hb = h + 24*j + 4*s
                if as_a: k.mfma(acc+16*j, w, hb, None if s == 0 else acc+16*j)
                else:    k.mfma(acc+16*j, hb, w, None if s == 0 else acc+16*j)
                n = 0
                while pend and n < 2 and (s >= 1):
                    pend.pop(0)(); n += 1
                while extra and n < 4:
                    extra.pop(0)(); n += 1
        while pend: pend.pop(0)()
        for j in range(2):
            for i in range(8):
                pend.append(lambda d=dst+24*j+8*ct+i, a=acc+16*j+2*i: k.pack(d, a, a+1))
    while pend: pend.pop(0)()
    while extra: extra.pop(0)()

def gen_main():
    k = K()
    kn = NAME + "_kernel"
    k.out.append(f".globl {kn}\n.p2align 8\n.type {kn},@function\n{kn}:")
    k.salu("s_cmp_ge_u32 s2, 784")
    k.salu("s_cbranch_scc1 L_main_done")
    k.salu("s_load_dwordx2 s[4:5], s[0:1], 0")
    k.salu("s_load_dwordx2 s[6:7], s[0:1], 40")
    k.salu("s_load_dwordx2 s[8:9], s[0:1], 56")
    k.v2("v_lshrrev_b32", T0, "6", 0)
    k.v2("v_and_b32", V_LANE, "63", 0)
    k.valu(f"v_readfirstlane_b32 s{S_WAVE}, {vr(T0)}", r=[T0], sw=[S_WAVE], kind="readlane")
    k.salu("s_mul_i32 s25, s2, 2341")
    k.salu("s_lshr_b32 s25, s25, 16")
    k.salu("s_mul_i32 s26, s25, 28")
    k.salu("s_sub_u32 s26, s2, s26")
    k.salu(f"s_mul_i32 s{S_BASE}, s25, {8*ROW}")
    k.salu("s_mul_i32 s28, s26, 1536")
    k.salu(f"s_add_u32 s{S_BASE}, s{S_BASE}, s28")
    k.salu(f"s_mov_b32 s{S_ONES}, 0x3f803f80")
    hf, tok = T0+1, T0+2
    k.v2("v_lshrrev_b32", hf, "5", V_LANE)
    k.v2("v_and_b32", tok, "31", V_LANE)
    t_, pos = T0+3, T0+4
    k.v2("v_and_b32", t_, "3", V_LANE)
    k.v2("v_lshrrev_b32", pos, "2", tok)
    k.salu(f"s_mov_b32 s{S_TMP}, {T_STRIDE}")
    k.valu(f"v_mul_lo_u32 {vr(V_XOFF)}, {vr(t_)}, s{S_TMP}", w=[V_XOFF], r=[t_])
    k.v2("v_mul_u32_u24", T0+5, "0xc0", pos)
    k.v2("v_add_u32", V_XOFF, V_XOFF, T0+5)
    k.v2("v_lshlrev_b32", T0+5, "4", hf)
    k.v2("v_add_u32", V_XOFF, V_XOFF, T0+5)
    k.v2("v_lshlrev_b32", V_WG, "4", 0)
    k.v2("v_lshlrev_b32", V_WRD, "4", V_LANE)
    k.raw("s_waitcnt lgkmcnt(0)")
    for base, ptr, n in ((SRD_X, 4, X_BYTES), (SRD_O, 6, X_BYTES), (SRD_W, 8, 2*WS_STAGE)):
        k.salu(f"s_mov_b32 s{base}, s{ptr}")
        k.salu(f"s_and_b32 s{base+1}, s{ptr+1}, 0xffff")
        k.salu(f"s_mov_b32 s{base+2}, {n}")
        k.salu(f"s_mov_b32 s{base+3}, 0x20000")
    for c in range(8):
        k.salu(f"s_mov_b32 s{S_TMP}, {4096 + c*4096}")
        k.buf_load(ACC+4*c, 4, V_WG, SRD_W, S_TMP, 0)
    for f in range(4):
        k.buf_load(PT+4*f, 4, V_WRD, SRD_W, None, f*1024)
    k.salu(f"s_mul_i32 s{S_SO0}, s{S_WAVE}, {2*ROW}")
    k.salu(f"s_add_u32 s{S_SO0}, s{S_SO0}, s{S_BASE}")
    k.salu(f"s_add_u32 s{S_SO1}, s{S_SO0}, {ROW}")
    for j in range(2):
        for s in range(6):
            k.buf_load(B0+24*j+4*s, 4, V_XOFF, SRD_X, S_SO0+j, 32*s)
    q3 = T0+7
    k.v2("v_lshrrev_b32", q3, "3", tok)
    for a, m in ((1, S_M1), (2, S_M2), (3, S_M3)):
        k.valu(f"v_cmp_eq_u32 {sr(m,2)}, {a}, {vr(q3)}", r=[q3], sw=[m, m+1])
    k.v2("v_and_b32", T0+6, "1", pos)
    k.v2("v_xor_b32", T0+6, T0+6, hf)
    k.v2("v_lshlrev_b32", T0+6, "2", T0+6)
    k.v2("v_add_u32", T0+6, T0+6, q3)
    for a in range(4):
        k.valu(f"v_cmp_eq_u32 {sr(S_MV[a],2)}, {a}, {vr(T0+6)}", r=[T0+6], sw=[S_MV[a], S_MV[a]+1])
    k.v2("v_lshlrev_b32", T0+5, "1", t_)
    k.v2("v_xor_b32", T0+5, T0+5, pos)
    k.v2("v_lshlrev_b32", T0+6, "5", hf)
    k.v2("v_add_u32", T0+5, T0+5, T0+6)
    k.v2("v_lshlrev_b32", T0+5, "4", T0+5)
    k.v2("v_mul_u32_u24", T0+6, "0x3000", t_)
    k.v2("v_add_u32", V_XW, T0+5, T0+6)
    k.salu(f"s_lshr_b32 s{S_TMP}, s{S_WAVE}, 1")
    k.salu(f"s_mul_i32 s{S_TMP}, s{S_TMP}, 6144")
    k.salu(f"s_and_b32 s{S_TMP+1}, s{S_WAVE}, 1")
    k.salu(f"s_lshl_b32 s{S_TMP+1}, s{S_TMP+1}, 8")
    k.salu(f"s_add_u32 s{S_TMP}, s{S_TMP}, s{S_TMP+1}")
    k.salu(f"s_add_u32 s{S_TMP}, s{S_TMP}, {LDS_X}")
    k.v2("v_add_u32", V_XW, f"s{S_TMP}", V_XW)
    k.salu(f"s_lshl_b32 s{S_TMP}, s{S_WAVE}, 1")
    k.v2("v_xor_b32", V_XR, f"s{S_TMP}", V_LANE)
    k.v2("v_lshlrev_b32", V_XR, "4", V_XR)
    k.salu(f"s_mul_i32 s{S_TMP}, s{S_WAVE}, 12288")
    k.salu(f"s_add_u32 s{S_TMP}, s{S_TMP}, {LDS_X}")
    k.v2("v_add_u32", V_XR, f"s{S_TMP}", V_XR)
    k.salu(f"s_mov_b32 s{S_TMP}, {ROW}")
    k.valu(f"v_mul_lo_u32 {vr(V_OOFF)}, {vr(q3)}, s{S_TMP}", w=[V_OOFF], r=[q3])
    k.v2("v_and_b32", T0+5, "7", tok)
    k.v2("v_mul_u32_u24", T0+5, "0xc0", T0+5)
    k.v2("v_add_u32", V_OOFF, V_OOFF, T0+5)
    k.v2("v_lshlrev_b32", T0+5, "4", hf)
    k.v2("v_add_u32", V_OOFF, V_OOFF, T0+5)
    for c in range(8):
        k.ds_write(ACC+4*c, 4, V_WG, LDS_W + c*4096)
    for j in range(2):
        layernorm(k, B0+24*j, B1+24*j)
    k.wait_all_lgkm()
    k.barrier()
    wf = WFrag(k, PT)
    gemm(k, wf, 0, B1, B2, [ACC, ACC+32, ACC], as_a=True)
    SA = ACC+32
    for s in range(6):
        for j in range(2):
            k.mfma(SA+16*j, B1+24*j+4*s, B2+24*j+4*s, None if s == 0 else SA+16*j)
    for j in range(2):
        S = SA+16*j
        e = [T0+0, T0+1, T0+2, T0+3]; m = T0+4; sm = T0+5
        for r in range(4):
            k.cndmask(e[r], S+r, S+4+r, S_M1)
            k.cndmask(e[r], e[r], S+8+r, S_M2)
            k.cndmask(e[r], e[r], S+12+r, S_M3)
        k.v3("v_max3_f32", m, e[0], e[1], e[2])
        k.v2("v_max_f32", m, m, e[3])
        for r in range(4):
            k.v2("v_sub_f32", e[r], e[r], m)
        for r in range(4):
            k.v1("v_exp_f32", e[r], e[r], kind="trans")
        k.v2("v_add_f32", sm, e[0], e[1])
        k.v2("v_add_f32", m, e[2], e[3])
        k.v2("v_add_f32", sm, sm, m)
        k.v1("v_rcp_f32", sm, sm, kind="trans")
        for r in range(4):
            k.v2("v_mul_f32", e[r], e[r], sm)
        k.pack(e[0], e[0], e[1])
        k.pack(e[1], e[2], e[3])
        for a in range(4):
            k.cndmask(PT+8*j+2*a, "0", e[0], S_MV[a])
            k.cndmask(PT+8*j+2*a+1, "0", e[1], S_MV[a])
    gemm(k, wf, 1, B1, B2, [ACC, ACC+32, ACC], as_a=False)
    for c in range(8):
        k.salu(f"s_mov_b32 s{S_TMP}, {WS_STAGE + 4096 + c*4096}")
        k.buf_load(B1+4*c, 4, V_WG, SRD_W, S_TMP, 0)
    k.salu(f"s_mov_b32 s{S_TMP}, {WS_STAGE}")
    for f in range(4):
        k.buf_load(B1+32+4*f, 4, V_WRD, SRD_W, S_TMP, f*1024)
    pend = []
    n = 0
    for ct in range(3):
        for j in range(2):
            acc = ACC + 16*(n % 4); n += 1
            for i in range(8):
                xr = B0+24*j+8*ct+i
                k.v2("v_lshlrev_b32", acc+2*i, "16", xr)
                k.v2("v_and_b32", acc+2*i+1, "0xffff0000", xr)
            for a in range(2):
                k.mfma(acc, B2+24*j+8*ct+4*a, PT+8*j+4*a, acc)
            while pend: pend.pop(0)()
            def fin(acc=acc, ct=ct, j=j):
                for i in range(8):
                    k.pack(acc+i, acc+2*i, acc+2*i+1)
                for a in range(2):
                    k.ds_write(acc+4*a, 4, V_XW, (2*ct+a)*1024 + 128*j)
            pend.append(fin)
    while pend: pend.pop(0)()
    k.wait_all_lgkm()
    k.barrier()
    for j in range(2):
        for s in range(6):
            k.ds_read(B0+24*j+4*s, 4, V_XR, j*6144 + s*1024)
    for c in range(8):
        k.ds_write(B1+4*c, 4, V_WG, LDS_W + c*4096)
    for j in range(2):
        layernorm(k, B0+24*j, B2+24*j)
    k.wait_all_lgkm()
    k.barrier()
    wf = WFrag(k, B1+32)
    gemm(k, wf, 0, B2, B0, [ACC, ACC+32, ACC], as_a=True)
    for qt in range(2):
        for s in range(6):
            for kt in range(2):
                d = ACC+32*qt+16*kt
                k.mfma(d, B2+24*kt+4*s, B0+24*qt+4*s, None if s == 0 else d)
    extra = []
    def sm_spatial(qt):
        S = ACC+32*qt
        m, t, sm = T0+0+3*qt, T0+1+3*qt, T0+2+3*qt
        ops = []
        ops.append(lambda: k.v3("v_max3_f32", m, S, S+1, S+2))
        for i in range(3, 31, 2):
            ops.append(lambda i=i: k.v3("v_max3_f32", m, m, S+i, S+i+1))
        ops.append(lambda: k.v2("v_max_f32", m, m, S+31))
        ops.append(lambda: k.v1("v_mov_b32", t, m))
        ops.append(lambda: k.swap32(m, t))
        ops.append(lambda: k.v2("v_max_f32", m, m, t))
        for i in range(32):
            ops.append(lambda i=i: k.v2("v_sub_f32", S+i, S+i, m))
            ops.append(lambda i=i: k.v1("v_exp_f32", S+i, S+i, kind="trans"))
        ops.append(lambda: k.v2("v_add_f32", sm, S, S+1))
        for i in range(2, 32):
            ops.append(lambda i=i: k.v2("v_add_f32", sm, sm, S+i))
        ops.append(lambda: k.v1("v_mov_b32", t, sm))
        ops.append(lambda: k.swap32(sm, t))
        ops.append(lambda: k.v2("v_add_f32", sm, sm, t))
        ops.append(lambda: k.v1("v_rcp_f32", sm, sm, kind="trans"))
        for kt in range(2):
            for i in range(8):
                a = S+16*kt+2*i
                ops.append(lambda a=a: k.v2("v_mul_f32", a, a, sm))
                ops.append(lambda a=a: k.v2("v_mul_f32", a+1, a+1, sm))
                ops.append(lambda a=a, d=S+16*kt+i: k.pack(d, a, a+1))
        return ops
    extra = sm_spatial(0) + sm_spatial(1)
    gemm(k, wf, 1, B2, B0, [B1, B1, B1], as_a=False, extra=extra)
    for j in range(2):
        for s in range(6):
            k.ds_read(B2+24*j+4*s, 4, V_XR, j*6144 + s*1024)
    k.salu(f"s_mul_i32 s{S_SO0}, s{S_WAVE}, {T_STRIDE}")
    k.salu(f"s_add_u32 s{S_SO0}, s{S_SO0}, s{S_BASE}")
    k.salu(f"s_add_u32 s{S_SO1}, s{S_SO0}, {4*ROW}")
    pend = []; n = 0
    for ct in range(3):
        for qt in range(2):
            acc = B1 + 16*(n % 3); n += 1
            for i in range(8):
                xr = B2+24*qt+8*ct+i
                k.v2("v_lshlrev_b32", acc+2*i, "16", xr)
                k.v2("v_and_b32", acc+2*i+1, "0xffff0000", xr)
            for kt in range(2):
                for a in range(2):
                    k.mfma(acc, B0+24*kt+8*ct+4*a, ACC+32*qt+16*kt+4*a, acc)
            while pend: pend.pop(0)()
            def fin(acc=acc, ct=ct, qt=qt):
                for i in range(8):
                    k.pack(acc+i, acc+2*i, acc+2*i+1)
                for a in range(2):
                    k.buf_store(acc+4*a, 4, V_OOFF, SRD_O, S_SO0+qt, 32*(2*ct+a))
            pend.append(fin)
    while pend: pend.pop(0)()
    k.label("L_main_done")
    k.raw("s_endpgm")
    print("main counts:", k.counts, file=sys.stderr)
    return k.text()

def main():
    s = HEADER + gen_fold() + gen_main()
    s += '.section .rodata,"a"\n.p2align 6\n' + kd("fold_kernel", 144, 40) + ".p2align 6\n" + kd(NAME + "_kernel", 256, 64)
    out = sys.argv[1] if len(sys.argv) > 1 else f"cdna_kernels/{NAME}.s"
    open(out, "w").write(s)

main()
```

```python
def vr(a, n=1):
    return f"v{a}" if n == 1 else f"v[{a}:{a+n-1}]"
def sr(a, n=1):
    return f"s{a}" if n == 1 else f"s[{a}:{a+n-1}]"
def R(a, n=1):
    return list(range(a, a+n))

class K:
    def __init__(self):
        self.out = []
        self.pos = 0
        self.valu_w = {}
        self.trans_w = {}
        self.dot_w = {}
        self.mfma_w = {}
        self.mfma_c = {}
        self.store_r = {}
        self.sgpr_w = {}
        self.lgkm = []
        self.vm = []
        self.counts = {}

    def raw(self, text, ws=1):
        self.out.append("  " + text)
        self.pos += ws
    def comment(self, t):
        self.out.append("  ; " + t)
    def label(self, t):
        self.out.append(t + ":")
    def nop(self, n):
        while n > 0:
            k = min(n, 16)
            self.raw(f"s_nop {k-1}", ws=k)
            self.counts['nop'] = self.counts.get('nop', 0) + 1
            n -= k
    def _need(self, prodpos, ws):
        have = self.pos - prodpos - 1
        if have < ws:
            self.nop(ws - have)
    def _wait_mem(self, regs):
        regs = set(regs)
        idx = -1
        for i, d in enumerate(self.lgkm):
            if d & regs: idx = i
        need_l = None
        if idx >= 0:
            n = len(self.lgkm) - 1 - idx
            need_l = min(n, 15)
            self.lgkm = self.lgkm[len(self.lgkm)-need_l:] if need_l > 0 else []
        idx = -1
        for i, d in enumerate(self.vm):
            if d & regs: idx = i
        need_v = None
        if idx >= 0:
            n = len(self.vm) - 1 - idx
            need_v = min(n, 63)
            self.vm = self.vm[len(self.vm)-need_v:] if need_v > 0 else []
        if need_l is not None or need_v is not None:
            t = "s_waitcnt"
            if need_v is not None: t += f" vmcnt({need_v})"
            if need_l is not None: t += f" lgkmcnt({need_l})"
            self.raw(t)
    def wait_all_lgkm(self):
        self.raw("s_waitcnt lgkmcnt(0)"); self.lgkm = []
    def wait_all_vm(self):
        self.raw("s_waitcnt vmcnt(0)"); self.vm = []
    def barrier(self):
        self.raw("s_barrier")

    def _mfma_d_hazard(self, regs, ws=12):
        for r in regs:
            if r in self.mfma_w:
                self._need(self.mfma_w[r][0], ws)

    def valu(self, text, w=(), r=(), sw=(), sr_=(), kind="valu"):
        w = list(w); r = list(r)
        self._wait_mem(w + r)
        self._mfma_d_hazard(w + r)
        for x in w:
            if x in self.mfma_c: self._need(self.mfma_c[x], 7)
            if x in self.store_r: self._need(self.store_r[x], 2)
        for x in r:
            if kind != "trans" and x in self.trans_w: self._need(self.trans_w[x], 1)
            if x in self.trans_w and kind == "trans": pass
            if x in self.dot_w and kind != "dotc": self._need(self.dot_w[x], 3)
            if kind == "permlane" and x in self.valu_w: self._need(self.valu_w[x], 2)
            if kind == "readlane" and x in self.valu_w: self._need(self.valu_w[x], 1)
        for x in w:
            if x in self.dot_w and kind != "dotc": self._need(self.dot_w[x], 3)
        for s in sr_:
            if s in self.sgpr_w: self._need(self.sgpr_w[s], 2)
        self.raw(text)
        p = self.pos - 1
        for x in w:
            self.valu_w[x] = p
            self.trans_w.pop(x, None); self.dot_w.pop(x, None); self.mfma_w.pop(x, None)
            if kind == "trans": self.trans_w[x] = p
            if kind in ("dotc", "dot"): self.dot_w[x] = p
        for s in sw: self.sgpr_w[s] = p
        self.counts[kind] = self.counts.get(kind, 0) + 1

    def mfma(self, d, a, b, c=None):
        D = R(d, 16); A = R(a, 4); B = R(b, 4); C = R(c, 16) if c is not None else []
        self._wait_mem(D + A + B + C)
        for x in A + B + C:
            if x in self.valu_w: self._need(self.valu_w[x], 2)
            if x in self.dot_w: self._need(self.dot_w[x], 3)
        for x in A + B:
            if x in self.mfma_w: self._need(self.mfma_w[x][0], 12)
        for x in C:
            if x in self.mfma_w:
                if self.mfma_w[x][1] != (c, 16): self._need(self.mfma_w[x][0], 10)
        cs = "0" if c is None else vr(c, 16)
        self.raw(f"v_mfma_f32_32x32x16_bf16 {vr(d,16)}, {vr(a,4)}, {vr(b,4)}, {cs}")
        p = self.pos - 1
        for x in D:
            self.mfma_w[x] = (p, (d, 16))
            self.valu_w.pop(x, None); self.trans_w.pop(x, None); self.dot_w.pop(x, None)
        for x in C: self.mfma_c[x] = p
        self.counts['mfma'] = self.counts.get('mfma', 0) + 1

    def ds_read(self, d, n, addr, off):
        D = R(d, n)
        self._wait_mem(D + [addr])
        self._mfma_d_hazard(D + [addr])
        op = {1: "ds_read_b32", 2: "ds_read_b64", 4: "ds_read_b128"}[n]
        self.raw(f"{op} {vr(d,n)}, {vr(addr)} offset:{off}")
        self.lgkm.append(set(D))
        for x in D:
            self.valu_w.pop(x, None); self.mfma_w.pop(x, None); self.trans_w.pop(x, None); self.dot_w.pop(x, None)
        self.counts['ds'] = self.counts.get('ds', 0) + 1
    def ds_write(self, s, n, addr, off):
        S = R(s, n)
        self._wait_mem(S + [addr])
        self._mfma_d_hazard(S + [addr])
        for x in S + [addr]:
            if x in self.dot_w: self._need(self.dot_w[x], 3)
        op = {1: "ds_write_b32", 2: "ds_write_b64", 4: "ds_write_b128"}[n]
        self.raw(f"{op} {vr(addr)}, {vr(s,n)} offset:{off}")
        self.lgkm.append(set())
        self.counts['ds'] = self.counts.get('ds', 0) + 1
    def buf_load(self, d, n, voff, srd, soff, off):
        D = R(d, n)
        self._wait_mem(D + [voff])
        self._mfma_d_hazard(D + [voff])
        for s in R(srd, 4) + ([soff] if isinstance(soff, int) else []):
            if s in self.sgpr_w: self._need(self.sgpr_w[s], 5)
        op = {1: "buffer_load_dword", 2: "buffer_load_dwordx2", 4: "buffer_load_dwordx4"}[n]
        so = sr(soff) if isinstance(soff, int) else "0"
        self.raw(f"{op} {vr(d,n)}, {vr(voff)}, {sr(srd,4)}, {so} offen offset:{off}")
        self.vm.append(set(D))
        for x in D:
            self.valu_w.pop(x, None); self.mfma_w.pop(x, None); self.trans_w.pop(x, None); self.dot_w.pop(x, None)
        self.counts['vmem'] = self.counts.get('vmem', 0) + 1
    def buf_store(self, s, n, voff, srd, soff, off):
        S = R(s, n)
        self._wait_mem(S + [voff])
        self._mfma_d_hazard(S + [voff])
        for x in R(srd, 4) + ([soff] if isinstance(soff, int) else []):
            if x in self.sgpr_w: self._need(self.sgpr_w[x], 5)
        op = {1: "buffer_store_dword", 2: "buffer_store_dwordx2", 4: "buffer_store_dwordx4"}[n]
        so = sr(soff) if isinstance(soff, int) else "0"
        self.raw(f"{op} {vr(s,n)}, {vr(voff)}, {sr(srd,4)}, {so} offen offset:{off}")
        self.vm.append(set())
        p = self.pos - 1
        if n >= 3:
            for x in S: self.store_r[x] = p
        self.counts['vmem'] = self.counts.get('vmem', 0) + 1
    def buf_load_lds(self, voff, srd, soff, tag):
        self._wait_mem([voff])
        self._mfma_d_hazard([voff])
        if voff in self.valu_w: pass
        so = sr(soff) if isinstance(soff, int) else "0"
        self.raw(f"buffer_load_dwordx4 {vr(voff)}, {sr(srd,4)}, {so} offen lds")
        self.vm.append({tag})
        self.counts['vmem'] = self.counts.get('vmem', 0) + 1
    def wait_tag(self, tag):
        self._wait_mem([tag])
    def salu(self, text):
        self.raw(text)
        self.counts['salu'] = self.counts.get('salu', 0) + 1

    def v2(self, op, d, a, b, kind="valu"):
        rs = [x for x in (a, b) if isinstance(x, int)]
        fa = vr(a) if isinstance(a, int) else a
        fb = vr(b) if isinstance(b, int) else b
        self.valu(f"{op} {vr(d)}, {fa}, {fb}", w=[d], r=rs, kind=kind)
    def v1(self, op, d, a, kind="valu"):
        rs = [a] if isinstance(a, int) else []
        fa = vr(a) if isinstance(a, int) else a
        self.valu(f"{op} {vr(d)}, {fa}", w=[d], r=rs, kind=kind)
    def v3(self, op, d, a, b, c, kind="valu"):
        rs = [x for x in (a, b, c) if isinstance(x, int)]
        f = [vr(x) if isinstance(x, int) else x for x in (a, b, c)]
        self.valu(f"{op} {vr(d)}, {f[0]}, {f[1]}, {f[2]}", w=[d], r=rs, kind=kind)
    def cndmask(self, d, f, t, m):
        rs = [x for x in (f, t) if isinstance(x, int)]
        ff = vr(f) if isinstance(f, int) else f
        ft = vr(t) if isinstance(t, int) else t
        self.valu(f"v_cndmask_b32 {vr(d)}, {ff}, {ft}, {sr(m,2)}", w=[d], r=rs, sr_=[m, m+1])
    def pack(self, d, lo, hi):
        self.valu(f"v_cvt_pk_bf16_f32 {vr(d)}, {vr(lo)}, {vr(hi)}", w=[d], r=[lo, hi])
    def swap32(self, a, b):
        self.valu(f"v_permlane32_swap_b32 {vr(a)}, {vr(b)}", w=[a, b], r=[a, b], kind="permlane")
    def text(self):
        return "\n".join(self.out) + "\n"
```

```python
from asmlib import *

class Op:
    __slots__ = ("kind", "fn", "args", "kw", "R", "W", "idx", "preds", "succs", "prio", "t_issue", "npred")
    def __init__(self, kind, fn, args, kw, R, W):
        self.kind = kind; self.fn = fn; self.args = args; self.kw = kw
        self.R = set(R); self.W = set(W)
        self.preds = []; self.succs = []

ISSUE = {"valu": 4, "trans": 8, "dotc": 4, "dot": 4, "permlane": 4, "readlane": 4, "mfma": 8, "ds_read": 4, "ds_write": 8,
         "vload": 4, "vstore": 8, "salu": 4}
def lat(p, c, dep):
    if dep == "RAW":
        if p.kind == "mfma":
            if c.kind == "mfma" and c.args[3] == p.args[0] and not (set(R(c.args[1],4)+R(c.args[2],4)) & p.W):
                return 32
            return 64
        if p.kind == "ds_read": return 140
        if p.kind == "vload": return 3000
        if p.kind == "trans": return 12
        if p.kind == "dotc": return 8 if c.kind == "dotc" else 16
        if p.kind == "dot": return 16
        if p.kind in ("valu", "permlane"):
            if c.kind in ("mfma", "permlane"): return 12
            return 5
        return 4
    if dep == "WAR":
        if p.kind == "mfma" and p.args[3] is not None and c.kind != "mfma" and (set(R(p.args[3],16)) & c.W): return 32
        if p.kind == "vstore": return 12
        return ISSUE[p.kind]
    if dep == "WAW":
        if p.kind == "mfma" and c.kind != "mfma": return 64
        if p.kind == "ds_read": return 140
        if p.kind == "vload": return 3000
        return ISSUE[p.kind]

class Rec:
    def __init__(self):
        self.ops = []
    def _add(self, kind, fn, args, kw, R_, W_):
        self.ops.append(Op(kind, fn, args, kw, R_, W_))
    def valu(self, text, w=(), r=(), sw=(), sr_=(), kind="valu"):
        self._add(kind, "valu", (text,), dict(w=list(w), r=list(r), sw=list(sw), sr_=list(sr_), kind=kind),
                  list(r) + [("s", s) for s in sr_], list(w) + [("s", s) for s in sw])
    def mfma(self, d, a, b, c=None):
        self._add("mfma", "mfma", (d, a, b, c), {}, R(a,4)+R(b,4)+(R(c,16) if c is not None else []), R(d,16))
    def ds_read(self, d, n, addr, off):
        self._add("ds_read", "ds_read", (d, n, addr, off), {}, [addr], R(d,n))
    def ds_write(self, s, n, addr, off):
        self._add("ds_write", "ds_write", (s, n, addr, off), {}, R(s,n)+[addr], [])
    def buf_load(self, d, n, voff, srd, soff, off):
        self._add("vload", "buf_load", (d, n, voff, srd, soff, off), {}, [voff] + ([("s", soff)] if isinstance(soff, int) else []), R(d,n))
    def buf_store(self, s, n, voff, srd, soff, off):
        self._add("vstore", "buf_store", (s, n, voff, srd, soff, off), {}, R(s,n)+[voff] + ([("s", soff)] if isinstance(soff, int) else []), [])
    def salu(self, text, sw=(), sr_=()):
        self._add("salu", "salu", (text,), {}, [("s", s) for s in sr_] , [("s", s) for s in sw] + ["scc"])
    v2 = K.v2; v1 = K.v1; v3 = K.v3; cndmask = K.cndmask; pack = K.pack; swap32 = K.swap32
    def comment(self, t): pass

    def schedule(self, verbose=False):
        ops = self.ops
        lastw = {}; readers = {}
        for i, o in enumerate(ops):
            o.idx = i
            deps = {}
            for r in o.R:
                if r in lastw: deps[lastw[r]] = max(deps.get(lastw[r], 0), lat(ops[lastw[r]], o, "RAW"))
            for w in o.W:
                if w in lastw: deps[lastw[w]] = max(deps.get(lastw[w], 0), lat(ops[lastw[w]], o, "WAW"))
                for q in readers.get(w, ()):
                    if q != i: deps[q] = max(deps.get(q, 0), lat(ops[q], o, "WAR"))
            for r in o.R: readers.setdefault(r, []).append(i)
            for w in o.W:
                lastw[w] = i; readers[w] = []
            o.preds = list(deps.items())
            for p, l in o.preds: ops[p].succs.append((i, l))
        for o in reversed(ops):
            o.prio = ISSUE[o.kind] + max([ops[s].prio + l for s, l in o.succs], default=0)
        for o in ops: o.npred = len(o.preds); o.t_issue = None
        est = {o.idx: 0 for o in ops}
        ready = [o.idx for o in ops if o.npred == 0]
        t = 0; mfma_free = 0; order = []
        while ready:
            avail = [i for i in ready if est[i] <= t]
            pick = None
            if avail:
                m = [i for i in avail if ops[i].kind == "mfma"]
                nm = [i for i in avail if ops[i].kind != "mfma"]
                if m and t >= mfma_free:
                    pick = max(m, key=lambda i: (ops[i].prio, -i))
                elif nm:
                    pick = max(nm, key=lambda i: (ops[i].prio, -i))
                elif m:
                    t = mfma_free
                    continue
            if pick is None:
                tn = min(est[i] for i in ready)
                t = max(t + 1, tn)
                continue
            o = ops[pick]
            o.t_issue = t
            order.append(pick)
            ready.remove(pick)
            if o.kind == "mfma": mfma_free = t + 32
            t += ISSUE[o.kind]
            for s, l in o.succs:
                est[s] = max(est[s], o.t_issue + l)
                ops[s].npred -= 1
                if ops[s].npred == 0: ready.append(s)
        assert len(order) == len(ops)
        self.est_cycles = t
        return [ops[i] for i in order]

    def emit(self, k, do_sched=True, stamps=None):
        seq = self.schedule() if do_sched else self.ops
        n = len(seq)
        marks = {}
        if stamps:
            for i, sg in enumerate(stamps):
                marks[(i+1)*n//(len(stamps)+1)] = sg
        for idx, o in enumerate(seq):
            if idx in marks:
                k.raw(f"s_memtime s[{marks[idx]}:{marks[idx]+1}]")
                import sys
                print(f"stamp at op {idx}/{n} est t={o.t_issue}", file=sys.stderr)
            getattr(k, o.fn)(*o.args, **o.kw)
        return getattr(self, "est_cycles", 0)
```

```python
import sys, math, struct
sys.path.insert(0, "gen")
from asmlib import *
from sched import Rec

NAME = "standalone__video_video_swin__vision"
T_STRIDE = 9633792
ROW = 43008
X_BYTES = 38535168
WS_STAGE = 36864
LDS_W = 0
LDS_X = 32768
LDS_TOTAL = 81920
NS = [int(a[2:]) for a in sys.argv[2:] if a.startswith("ns")]
NS = NS[0] if NS else 16
WS_X1 = 0x20000
PROF = len(sys.argv) > 2 and "prof" in sys.argv[2:]
PR = [a for a in sys.argv[2:] if a.startswith("R")]
PR = PR[0] if PR else None
NOSCHED = len(sys.argv) > 2 and "nosched" in sys.argv[2:]
ABL = set(a[4:] for a in sys.argv[2:] if a.startswith("abl_"))

HEADER = """; Kernarg layout for this problem (64 bytes, ptrs only, base s[0:1]):
;   offset   0: d_in[0] x  shape=(1, 4, 224, 224, 96) dtype=bfloat16 strides=(38535168, 9633792, 43008, 192, 2) contiguous=True
;   offset   8: d_in[1] wqkv_t  shape=(96, 288) dtype=bfloat16 strides=(576, 2) contiguous=True
;   offset  16: d_in[2] wo_t  shape=(96, 96) dtype=bfloat16 strides=(192, 2) contiguous=True
;   offset  24: d_in[3] wqkv_s  shape=(96, 288) dtype=bfloat16 strides=(576, 2) contiguous=True
;   offset  32: d_in[4] wo_s  shape=(96, 96) dtype=bfloat16 strides=(192, 2) contiguous=True
;   offset  40: d_out     shape=(1, 4, 224, 224, 96) dtype=bfloat16 (2 bytes/elem)
;   offset  48: d_debug   256 bytes
;   offset  56: d_ws      268435456 bytes workspace
; Two launches: (1) fold weights  M = scale*log2e*Wq*Wk^T and Wvo = Wv*Wo into MFMA fragment order in d_ws,
;               (2) fused temporal + spatial window attention, one workgroup per 8x8 window (all 4 frames);
;                   the last NS windows are split into a temporal-only and a spatial-only workgroup (hand-off
;                   through d_ws, flag bytes in d_debug) so that the load balances better over the CUs.
; (generated by gen/gen4.py)
; @launch kernel=fold_kernel grid=(36,1,1) block=(64,1,1) lds=0
; @launch kernel=%s_kernel grid=(%d,1,1) block=(256,1,1) lds=%d
.amdgcn_target "amdgcn-amd-amdhsa--gfx950"
.text
""" % (NAME, 784 + NS, LDS_TOTAL)

def kd(name, nv, ns):
    return f""".amdhsa_kernel {name}
  .amdhsa_next_free_vgpr {nv}
  .amdhsa_next_free_sgpr {ns}
  .amdhsa_accum_offset {(nv+3)//4*4}
  .amdhsa_group_segment_fixed_size 0
  .amdhsa_kernarg_size 64
  .amdhsa_user_sgpr_count 2
  .amdhsa_user_sgpr_kernarg_segment_ptr 1
  .amdhsa_system_sgpr_workgroup_id_x 1
.end_amdhsa_kernel
"""

def gen_fold():
    k = K()
    k.out.append(".globl fold_kernel\n.p2align 8\n.type fold_kernel,@function\nfold_kernel:")
    k.salu("s_cmp_ge_u32 s2, 36")
    k.salu("s_cbranch_scc1 L_fold_done")
    k.salu("s_load_dwordx4 s[4:7], s[0:1], 8")
    k.salu("s_load_dwordx4 s[8:11], s[0:1], 24")
    k.salu("s_load_dwordx2 s[12:13], s[0:1], 56")
    k.salu("s_mul_i32 s14, s2, 29")
    k.salu("s_lshr_b32 s14, s14, 8")
    k.salu("s_mul_i32 s15, s14, 9")
    k.salu("s_sub_u32 s15, s2, s15")
    k.salu("s_mul_i32 s16, s15, 86")
    k.salu("s_lshr_b32 s16, s16, 8")
    k.salu("s_mul_i32 s17, s16, 3")
    k.salu("s_sub_u32 s17, s15, s17")
    k.salu("s_and_b32 s18, s14, 1")
    k.salu("s_lshr_b32 s19, s14, 1")
    k.v2("v_and_b32", 1, "31", 0)
    k.v2("v_lshrrev_b32", 2, "5", 0)
    k.v2("v_and_b32", 3, "19", 1)
    k.v2("v_and_b32", 4, "4", 1)
    k.v2("v_lshlrev_b32", 4, "1", 4)
    k.v2("v_or_b32", 3, 3, 4)
    k.v2("v_and_b32", 4, "8", 1)
    k.v2("v_lshrrev_b32", 4, "1", 4)
    k.v2("v_or_b32", 3, 3, 4)
    k.raw("s_waitcnt lgkmcnt(0)")
    k.salu("s_cmp_eq_u32 s19, 0")
    k.salu("s_cselect_b32 s20, s4, s8")
    k.salu("s_cselect_b32 s21, s5, s9")
    k.salu("s_cselect_b32 s22, s6, s10")
    k.salu("s_cselect_b32 s23, s7, s11")
    k.salu("s_lshl_b32 s24, s16, 5")
    k.v2("v_add_u32", 5, "s24", 3)
    k.salu("s_movk_i32 s25, 576")
    k.valu("v_mul_lo_u32 v5, v5, s25", w=[5], r=[5])
    k.v2("v_lshlrev_b32", 6, "4", 2)
    k.v2("v_add_u32", 5, 5, 6)
    k.salu("s_mul_i32 s26, s18, 384")
    k.v2("v_add_u32", 5, "s26", 5)
    for s in range(6):
        k.raw(f"global_load_dwordx4 v[{16+4*s}:{19+4*s}], v5, s[20:21] offset:{32*s}")
    k.salu("s_lshl_b32 s24, s17, 5")
    k.v2("v_add_u32", 7, "s24", 3)
    k.salu("s_cmp_eq_u32 s18, 0")
    k.salu("s_cbranch_scc0 L_fold_wo")
    k.valu("v_mul_lo_u32 v8, v7, s25", w=[8], r=[7])
    k.v2("v_add_u32", 8, 8, 6)
    for s in range(6):
        k.raw(f"global_load_dwordx4 v[{40+4*s}:{43+4*s}], v8, s[20:21] offset:{192+32*s}")
    k.salu("s_branch L_fold_mm")
    k.label("L_fold_wo")
    k.v2("v_lshlrev_b32", 8, "1", 7)
    k.salu("s_movk_i32 s27, 1536")
    k.valu("v_mul_lo_u32 v9, v2, s27", w=[9], r=[2])
    k.v2("v_add_u32", 8, 8, 9)
    for s in range(6):
        if s > 0:
            k.v2("v_add_u32", 8, "0xc00", 8)
        for j in range(8):
            k.raw(f"global_load_ushort v{96+8*s+j}, v8, s[22:23] offset:{192*j}")
    k.raw("s_waitcnt vmcnt(0)")
    for i in range(24):
        k.raw(f"v_lshl_or_b32 v{40+i}, v{96+2*i+1}, 16, v{96+2*i}")
    k.nop(2)
    k.label("L_fold_mm")
    k.raw("s_waitcnt vmcnt(0)")
    for s in range(6):
        k.raw(f"v_mfma_f32_32x32x16_bf16 v[64:79], v[{16+4*s}:{19+4*s}], v[{40+4*s}:{43+4*s}], " + ("0" if s == 0 else "v[64:79]"))
    c0 = (96 ** -0.5) * math.log2(math.e)
    c0bits = struct.unpack("<I", struct.pack("<f", c0))[0]
    k.salu(f"s_mov_b32 s28, {c0bits:#x}")
    k.salu("s_cmp_eq_u32 s18, 0")
    k.salu("s_cselect_b32 s28, s28, 1.0")
    k.salu("s_mul_i32 s30, s16, 6")
    k.salu("s_add_u32 s30, s30, s17")
    k.salu("s_mul_i32 s31, s17, 6")
    k.salu("s_lshl_b32 s32, s16, 1")
    k.salu("s_add_u32 s31, s31, s32")
    k.salu("s_add_u32 s31, s31, 18")
    k.salu("s_cmp_eq_u32 s18, 0")
    k.salu("s_cselect_b32 s30, s30, s31")
    k.salu("s_movk_i32 s31, 3072")
    k.salu("s_movk_i32 s32, 1024")
    k.salu("s_cselect_b32 s31, s31, s32")
    k.salu("s_lshl_b32 s30, s30, 10")
    k.salu("s_mul_i32 s29, s19, 36864")
    k.salu("s_add_u32 s29, s29, s30")
    k.v2("v_lshlrev_b32", 10, "4", 0)
    k.v2("v_add_u32", 10, "s29", 10)
    k.v2("v_add_u32", 11, "s31", 10)
    k.nop(16)
    for i in range(16):
        k.v2("v_mul_f32", 64+i, "s28", 64+i)
    for i in range(8):
        k.pack(80+i, 64+2*i, 65+2*i)
    k.raw("global_store_dwordx4 v10, v[80:83], s[12:13]")
    k.raw("global_store_dwordx4 v11, v[84:87], s[12:13]")
    k.label("L_fold_done")
    k.raw("s_endpgm")
    return k.text()

XP, HH = 16, 64
A = [112 + 16*i for i in range(8)]
WF = 240
V_IVAL, V_LANE, V_XOFF, V_XW, V_XR, V_OOFF, V_WRD, V_WG = 0, 1, 2, 3, 4, 5, 6, 7
T0 = 8
SRD_X, SRD_O, SRD_W = 12, 16, 20
S_WAVE, S_BASE = 24, 27
S_ONES = 30
S_M1, S_M2, S_M3 = 32, 34, 36
S_MV = [38, 40, 42, 44]
S_SO0, S_SO1 = 46, 47
S_OO0, S_OO1 = 50, 51
S_TMP = 48
S_MODE, S_SLOT, S_X1 = 61, 62, 63
S_IM = [64 + 2*i for i in range(8)]
S_WOFF = [52 + i for i in range(9)]

def ln_stats(k, xp, tmp):
    s0, s1, q0, q1, r, nb = R(tmp, 6)
    for i in range(24):
        s = (s0, s1)[i & 1]; q = (q0, q1)[i & 1]
        if i < 2:
            k.valu(f"v_dot2_f32_bf16 {vr(s)}, {vr(xp+i)}, s{S_ONES}, 0", w=[s], r=[xp+i], kind="dotc")
            k.valu(f"v_dot2_f32_bf16 {vr(q)}, {vr(xp+i)}, {vr(xp+i)}, 0", w=[q], r=[xp+i], kind="dotc")
        else:
            k.valu(f"v_dot2_f32_bf16 {vr(s)}, {vr(xp+i)}, s{S_ONES}, {vr(s)}", w=[s], r=[xp+i, s], kind="dotc")
            k.valu(f"v_dot2_f32_bf16 {vr(q)}, {vr(xp+i)}, {vr(xp+i)}, {vr(q)}", w=[q], r=[xp+i, q], kind="dotc")
    k.v2("v_add_f32", s0, s0, s1)
    k.v2("v_add_f32", q0, q0, q1)
    s, q = s0, q0
    k.swap32(s, q)
    k.v2("v_add_f32", s, s, q)
    k.v1("v_mov_b32", q, s)
    k.swap32(s, q)
    k.v2("v_mul_f32", s, "0x3c2aaaab", s)
    k.v2("v_mul_f32", q, "0x3c2aaaab", q)
    k.valu(f"v_fma_f32 {vr(q)}, -{vr(s)}, {vr(s)}, {vr(q)}", w=[q], r=[s, q])
    k.v2("v_max_f32", q, "0", q)
    k.v2("v_add_f32", q, "0x3727c5ac", q)
    k.v1("v_rsq_f32", r, q, kind="trans")
    k.valu(f"v_mul_f32 {vr(nb)}, -{vr(s)}, {vr(r)}", w=[nb], r=[s, r])
    return r, nb

def ln_norm_kstep(k, xp, h, r, nb, tmp, s):
    for i in range(4*s, 4*s+4):
        if 'nonorm' in ABL: continue
        lo = tmp + 2*(i % 4); hi = lo + 1
        k.v2("v_lshlrev_b32", lo, "16", xp+i)
        k.v2("v_and_b32", hi, "0xffff0000", xp+i)
        k.v3("v_fma_f32", lo, lo, r, nb)
        k.v3("v_fma_f32", hi, hi, r, nb)
        k.pack(h+i, lo, hi)

class WFrag:
    def __init__(self, k): self.k = k
    def get(self, p):
        reg = WF + 4*(p % 4)
        if p >= 4 and 'nofrag' not in ABL:
            self.k.ds_read(reg, 4, V_WRD, LDS_W + (p-4)*1024)
        return reg

def pack_pair(k, a0, a1):
    for i in range(8): k.pack(a0+i, a0+2*i, a0+2*i+1)
    for i in range(8): k.pack(a0+8+i, a1+2*i, a1+2*i+1)

def ident(k, dst):
    for i in range(8):
        k.cndmask(dst+i, "0", V_IVAL, S_IM[i])

def stage_front(k, wf, lnp):
    for s in range(6):
        for j in range(2):
            ln_norm_kstep(k, XP+24*j, HH+24*j, lnp[j][0], lnp[j][1], A[7]+8*j, s)
        for ct in range(3):
            w = wf.get(s*3+ct)
            for j in range(2):
                a = A[2*ct+j]
                k.mfma(a, w, HH+24*j+4*s, None if s == 0 else a)
    for ct in range(3):
        pack_pair(k, A[2*ct], A[2*ct+1])

def Gop(j, s):
    return A[2*(s//2)] + 8*j + 4*(s % 2)

def vgemm_ct(k, wf, ct, b0, b1):
    for s in range(6):
        w = wf.get(18+ct*6+s)
        for j, a in enumerate((b0, b1)):
            k.mfma(a, HH+24*j+4*s, w, None if s == 0 else a)
    pack_pair(k, b0, b1)

def stamp(k, idx, force=False):
    if not PROF: return
    if PR and not force: return
    k.raw(f"s_memtime s[{64+24+2*idx}:{65+24+2*idx}]")
    k.raw("s_waitcnt lgkmcnt(0)"); k.lgkm = []

def gen_main():
    if 'nomfma' in ABL:
        Rec.mfma = lambda self, d, a, b, c=None: None
    k = K()
    kn = NAME + "_kernel"
    k.out.append(f".globl {kn}\n.p2align 8\n.type {kn},@function\n{kn}:")
    k.salu(f"s_cmp_ge_u32 s2, {784+NS}")
    k.salu("s_cbranch_scc1 L_main_done")
    k.salu("s_load_dwordx2 s[4:5], s[0:1], 0")
    k.salu("s_load_dwordx4 s[8:11], s[0:1], 48")
    k.salu("s_load_dwordx2 s[6:7], s[0:1], 40")
    k.salu(f"s_mov_b32 s{S_MODE}, 1")
    k.salu(f"s_sub_u32 s3, s2, {NS}")
    k.salu(f"s_mov_b32 s{S_SLOT}, s2")
    k.salu(f"s_cmp_lt_u32 s2, {NS}")
    k.salu(f"s_cselect_b32 s{S_MODE}, 0, s{S_MODE}")
    k.salu(f"s_sub_u32 s28, s2, 784")
    k.salu(f"s_cmp_ge_u32 s2, 784")
    k.salu(f"s_cselect_b32 s{S_MODE}, 2, s{S_MODE}")
    k.salu(f"s_cselect_b32 s{S_SLOT}, s28, s{S_SLOT}")
    k.salu(f"s_add_u32 s28, s{S_SLOT}, {784-NS}")
    k.salu(f"s_cmp_eq_u32 s{S_MODE}, 1")
    k.salu(f"s_cselect_b32 s3, s3, s28")
    k.v2("v_lshrrev_b32", T0, "6", 0)
    k.v2("v_and_b32", V_LANE, "63", 0)
    k.valu(f"v_readfirstlane_b32 s{S_WAVE}, {vr(T0)}", r=[T0], sw=[S_WAVE], kind="readlane")
    k.salu("s_mul_i32 s25, s3, 2341")
    k.salu("s_lshr_b32 s25, s25, 16")
    k.salu("s_mul_i32 s26, s25, 28")
    k.salu("s_sub_u32 s26, s3, s26")
    k.salu(f"s_mul_i32 s{S_BASE}, s25, {8*ROW}")
    k.salu("s_mul_i32 s28, s26, 1536")
    k.salu(f"s_add_u32 s{S_BASE}, s{S_BASE}, s28")
    k.salu(f"s_mov_b32 s{S_ONES}, 0x3f803f80")
    hf, tok, t_, pos, q3 = T0+1, T0+2, T0+3, T0+4, T0+7
    k.v2("v_lshrrev_b32", hf, "5", V_LANE)
    k.v2("v_and_b32", tok, "31", V_LANE)
    k.v2("v_and_b32", t_, "3", V_LANE)
    k.v2("v_lshrrev_b32", pos, "2", tok)
    k.salu(f"s_mov_b32 s{S_TMP}, {T_STRIDE}")
    k.valu(f"v_mul_lo_u32 {vr(V_XOFF)}, {vr(t_)}, s{S_TMP}", w=[V_XOFF], r=[t_])
    k.v2("v_mul_u32_u24", T0+5, "0xc0", pos)
    k.v2("v_add_u32", V_XOFF, V_XOFF, T0+5)
    k.v2("v_lshlrev_b32", T0+5, "4", hf)
    k.v2("v_add_u32", V_XOFF, V_XOFF, T0+5)
    k.v2("v_lshlrev_b32", V_WG, "4", 0)
    k.v2("v_lshlrev_b32", V_WRD, "4", V_LANE)
    k.salu(f"s_mul_i32 s{S_SO0}, s{S_WAVE}, {2*ROW}")
    k.salu(f"s_add_u32 s{S_SO0}, s{S_SO0}, s{S_BASE}")
    k.salu(f"s_add_u32 s{S_SO1}, s{S_SO0}, {ROW}")
    k.raw("s_waitcnt lgkmcnt(0)")
    for base, ptr, n in ((SRD_X, 4, X_BYTES), (SRD_O, 6, X_BYTES), (SRD_W, 10, WS_X1 + NS*49152)):
        k.salu(f"s_mov_b32 s{base}, s{ptr}")
        k.salu(f"s_and_b32 s{base+1}, s{ptr+1}, 0xffff")
        k.salu(f"s_mov_b32 s{base+2}, {n}")
        k.salu(f"s_mov_b32 s{base+3}, 0x20000")
    if PROF:
        k.raw("s_memrealtime s[84:85]")
        k.raw("s_getreg_b32 s86, hwreg(HW_REG_HW_ID)")
        k.raw("s_getreg_b32 s87, hwreg(HW_REG_XCC_ID)")
    stamp(k, 0)
    k.salu(f"s_mul_i32 s{S_X1}, s{S_SLOT}, 49152")
    k.salu(f"s_mul_i32 s{S_TMP}, s{S_WAVE}, 12288")
    k.salu(f"s_add_u32 s{S_X1}, s{S_X1}, s{S_TMP}")
    k.salu(f"s_add_u32 s{S_X1}, s{S_X1}, {WS_X1}")
    k.salu(f"s_cmp_eq_u32 s{S_MODE}, 2")
    k.salu("s_cbranch_scc1 L_skipld")
    for c in range(8):
        k.salu(f"s_mov_b32 s{S_TMP}, {4096 + c*4096}")
        k.buf_load(A[0]+4*c, 4, V_WG, SRD_W, S_TMP, 0)
    for j in range(2):
        for s in range(6):
            if 'noload' not in ABL: k.buf_load(XP+24*j+4*s, 4, V_XOFF, SRD_X, S_SO0+j, 32*s)
    for f in range(4):
        k.buf_load(WF+4*f, 4, V_WRD, SRD_W, None, f*1024)
    k.label("L_skipld")
    for c in range(8):
        k.salu(f"s_mov_b32 s{S_WOFF[c]}, {WS_STAGE + 4096 + c*4096}")
    k.salu(f"s_mov_b32 s{S_WOFF[8]}, {WS_STAGE}")
    k.salu(f"s_mul_i32 s{S_OO0}, s{S_WAVE}, {T_STRIDE}")
    k.salu(f"s_add_u32 s{S_OO0}, s{S_OO0}, s{S_BASE}")
    k.salu(f"s_add_u32 s{S_OO1}, s{S_OO0}, {4*ROW}")
    k.v2("v_lshrrev_b32", q3, "3", tok)
    for a, m in ((1, S_M1), (2, S_M2), (3, S_M3)):
        k.valu(f"v_cmp_eq_u32 {sr(m,2)}, {a}, {vr(q3)}", r=[q3], sw=[m, m+1])
    k.v2("v_and_b32", T0+6, "1", pos)
    k.v2("v_xor_b32", T0+6, T0+6, hf)
    k.v2("v_lshlrev_b32", T0+5, "2", T0+6)
    k.v2("v_add_u32", T0+5, T0+5, q3)
    for a in range(4):
        k.valu(f"v_cmp_eq_u32 {sr(S_MV[a],2)}, {a}, {vr(T0+5)}", r=[T0+5], sw=[S_MV[a], S_MV[a]+1])
    k.v2("v_lshlrev_b32", T0+6, "3", T0+6)
    k.v2("v_lshlrev_b32", T0+5, "1", q3)
    k.v2("v_add_u32", T0+6, T0+6, T0+5)
    k.valu(f"v_bfe_u32 {vr(T0+5)}, {vr(tok)}, 1, 1", w=[T0+5], r=[tok])
    k.v2("v_add_u32", T0+6, T0+6, T0+5)
    for i in range(8):
        k.valu(f"v_cmp_eq_u32 {sr(S_IM[i],2)}, {i}, {vr(T0+6)}", r=[T0+6], sw=[S_IM[i], S_IM[i]+1])
    k.v2("v_lshlrev_b32", T0+5, "1", t_)
    k.v2("v_xor_b32", T0+5, T0+5, pos)
    k.v2("v_lshlrev_b32", T0+6, "5", hf)
    k.v2("v_add_u32", T0+5, T0+5, T0+6)
    k.v2("v_lshlrev_b32", T0+5, "4", T0+5)
    k.v2("v_mul_u32_u24", T0+6, "0x3000", t_)
    k.v2("v_add_u32", V_XW, T0+5, T0+6)
    k.salu(f"s_lshr_b32 s{S_TMP}, s{S_WAVE}, 1")
    k.salu(f"s_mul_i32 s{S_TMP}, s{S_TMP}, 6144")
    k.salu(f"s_and_b32 s{S_TMP+1}, s{S_WAVE}, 1")
    k.salu(f"s_lshl_b32 s{S_TMP+1}, s{S_TMP+1}, 8")
    k.salu(f"s_add_u32 s{S_TMP}, s{S_TMP}, s{S_TMP+1}")
    k.salu(f"s_add_u32 s{S_TMP}, s{S_TMP}, {LDS_X}")
    k.v2("v_add_u32", V_XW, f"s{S_TMP}", V_XW)
    k.salu(f"s_lshl_b32 s{S_TMP}, s{S_WAVE}, 1")
    k.v2("v_xor_b32", V_XR, f"s{S_TMP}", V_LANE)
    k.v2("v_lshlrev_b32", V_XR, "4", V_XR)
    k.salu(f"s_mul_i32 s{S_TMP}, s{S_WAVE}, 12288")
    k.salu(f"s_add_u32 s{S_TMP}, s{S_TMP}, {LDS_X}")
    k.v2("v_add_u32", V_XR, f"s{S_TMP}", V_XR)
    k.salu(f"s_mov_b32 s{S_TMP}, {ROW}")
    k.valu(f"v_mul_lo_u32 {vr(V_OOFF)}, {vr(q3)}, s{S_TMP}", w=[V_OOFF], r=[q3])
    k.v2("v_and_b32", T0+5, "7", tok)
    k.v2("v_mul_u32_u24", T0+5, "0xc0", T0+5)
    k.v2("v_add_u32", V_OOFF, V_OOFF, T0+5)
    k.v2("v_lshlrev_b32", T0+5, "4", hf)
    k.v2("v_add_u32", V_OOFF, V_OOFF, T0+5)
    k.v2("v_and_b32", T0+5, "1", tok)
    k.v2("v_lshlrev_b32", T0+5, "4", T0+5)
    k.v1("v_mov_b32", T0+6, "0x3f80")
    k.v2("v_lshlrev_b32", V_IVAL, T0+5, T0+6)
    k.salu(f"s_cmp_eq_u32 s{S_MODE}, 2")
    k.salu("s_cbranch_scc1 L_Shead")
    for c in range(8):
        k.ds_write(A[0]+4*c, 4, V_WG, LDS_W + c*4096)
    k.wait_all_lgkm()
    k.barrier()
    stamp(k, 2)
    if PROF:
        k.wait_all_vm()
        stamp(k, 3)
    r = Rec(); wf = WFrag(r)
    lnp = [ln_stats(r, XP+24*j, A[6]+8*j) for j in range(2)]
    stage_front(r, wf, lnp)
    vgemm_ct(r, wf, 0, A[1], A[3])
    SA = [A[5], A[6]]
    for s in range(6):
        for j in range(2):
            r.mfma(SA[j], HH+24*j+4*s, Gop(j, s), None if s == 0 else SA[j])
    vgemm_ct(r, wf, 1, A[7], A[3])
    PT = A[4]
    for j in range(2):
        S = SA[j]
        e = [T0+0, T0+1, T0+2, T0+3]; m = T0+4; sm = T0+5
        for q in range(4):
            r.cndmask(e[q], S+q, S+4+q, S_M1)
            r.cndmask(e[q], e[q], S+8+q, S_M2)
            r.cndmask(e[q], e[q], S+12+q, S_M3)
        r.v3("v_max3_f32", m, e[0], e[1], e[2])
        r.v2("v_max_f32", m, m, e[3])
        for q in range(4): r.v2("v_sub_f32", e[q], e[q], m)
        for q in range(4): r.v1("v_exp_f32", e[q], e[q], kind="trans")
        r.v2("v_add_f32", sm, e[0], e[1])
        r.v2("v_add_f32", m, e[2], e[3])
        r.v2("v_add_f32", sm, sm, m)
        r.v1("v_rcp_f32", sm, sm, kind="trans")
        for q in range(4): r.v2("v_mul_f32", e[q], e[q], sm)
        r.pack(e[0], e[0], e[1])
        r.pack(e[1], e[2], e[3])
        for a in range(4):
            r.cndmask(PT+8*j+2*a, "0", e[0], S_MV[a])
            r.cndmask(PT+8*j+2*a+1, "0", e[1], S_MV[a])
    vgemm_ct(r, wf, 2, A[0], A[2])
    VV = [A[1], A[7], A[0]]
    for c in range(8):
        r.buf_load(HH+4*c, 4, V_WG, SRD_W, S_WOFF[c], 0)
    for f in range(4):
        r.buf_load(WF+4*f, 4, V_WRD, SRD_W, S_WOFF[8], f*1024)
    ID = HH+32
    ident(r, ID)
    OA = [A[5], A[6], A[3], A[2]]
    n = 0
    for ct in range(3):
        for j in range(2):
            acc = OA[n % 4]; n += 1
            r.mfma(acc, ID, XP+24*j+8*ct, None)
            r.mfma(acc, ID+4, XP+24*j+8*ct+4, acc)
            for a in range(2):
                r.mfma(acc, VV[ct]+8*j+4*a, PT+8*j+4*a, acc)
            for i in range(8): r.pack(acc+i, acc+2*i, acc+2*i+1)
            for a in range(2): r.ds_write(acc+4*a, 4, V_XW, (2*ct+a)*1024 + 128*j)
    if PR == "R1": stamp(k, 0, True)
    e1 = r.emit(k, not NOSCHED, stamps=[90,92,94,96] if PR == "R1" else None)
    if PR == "R1": stamp(k, 5, True)
    k.wait_all_lgkm()
    k.barrier()
    stamp(k, 4)
    k.salu(f"s_cmp_eq_u32 s{S_MODE}, 0")
    k.salu("s_cbranch_scc1 L_Ttail")
    k.label("L_R2")
    r = Rec()
    for j in range(2):
        for s in range(6):
            r.ds_read(XP+24*j+4*s, 4, V_XR, j*6144 + s*1024)
    for c in range(8):
        r.ds_write(HH+4*c, 4, V_WG, LDS_W + c*4096)
    lnp = [ln_stats(r, XP+24*j, A[6]+8*j) for j in range(2)]
    e2 = r.emit(k, not NOSCHED)
    k.wait_all_lgkm()
    k.barrier()
    r = Rec(); wf = WFrag(r)
    stage_front(r, wf, lnp)
    SB = [[A[1], A[3]], [A[7], A[6]]]
    def sgemm(qt):
        for s in range(6):
            for kt in range(2):
                d = SB[qt][kt]
                r.mfma(d, HH+24*kt+4*s, Gop(qt, s), None if s == 0 else d)
    def softmax(qt):
        S = [SB[qt][0]+i for i in range(16)] + [SB[qt][1]+i for i in range(16)]
        m, t, sm, sm2 = T0+4*qt, T0+1+4*qt, T0+2+4*qt, T0+3+4*qt
        r.v3("v_max3_f32", m, S[0], S[1], S[2])
        r.v3("v_max3_f32", t, S[3], S[4], S[5])
        for i in range(6, 30, 4):
            r.v3("v_max3_f32", m, m, S[i], S[i+1])
            r.v3("v_max3_f32", t, t, S[i+2], S[i+3])
        r.v3("v_max3_f32", m, m, S[30], S[31])
        r.v2("v_max_f32", m, m, t)
        r.v1("v_mov_b32", t, m)
        r.swap32(m, t)
        r.v2("v_max_f32", m, m, t)
        for i in range(32):
            r.v2("v_sub_f32", S[i], S[i], m)
            r.v1("v_exp_f32", S[i], S[i], kind="trans")
        r.v2("v_add_f32", sm, S[0], S[1])
        r.v2("v_add_f32", sm2, S[2], S[3])
        for i in range(4, 32, 2):
            r.v2("v_add_f32", sm, sm, S[i])
            r.v2("v_add_f32", sm2, sm2, S[i+1])
        r.v2("v_add_f32", sm, sm, sm2)
        r.v1("v_mov_b32", t, sm)
        r.swap32(sm, t)
        r.v2("v_add_f32", sm, sm, t)
        r.v1("v_rcp_f32", sm, sm, kind="trans")
        for i in range(16):
            r.v2("v_mul_f32", S[2*i], S[2*i], sm)
            r.v2("v_mul_f32", S[2*i+1], S[2*i+1], sm)
            r.pack(SB[qt][0]+i, S[2*i], S[2*i+1])
    sgemm(0)
    vgemm_ct(r, wf, 0, A[5], A[6])
    sgemm(1)
    if 'nosm' not in ABL: softmax(0)
    vgemm_ct(r, wf, 1, A[0], A[2])
    if 'nosm' not in ABL: softmax(1)
    vgemm_ct(r, wf, 2, A[4], A[2])
    VV = [A[5], A[0], A[4]]
    ID = HH+32
    ident(r, ID)
    OA = [A[3], A[2], A[6], HH, HH+16]
    n = 0
    for qt in range(2):
        for ct in range(3):
            acc = OA[n % 5]; n += 1
            r.mfma(acc, ID, XP+24*qt+8*ct, None)
            r.mfma(acc, ID+4, XP+24*qt+8*ct+4, acc)
            for kt in range(2):
                for a in range(2):
                    r.mfma(acc, VV[ct]+8*kt+4*a, SB[qt][0]+8*kt+4*a, acc)
            for i in range(8): r.pack(acc+i, acc+2*i, acc+2*i+1)
            for a in range(2):
                if 'nostore' not in ABL or (ct==0 and a==0): r.buf_store(acc+4*a, 4, V_OOFF, SRD_O, S_OO0+qt, 32*(2*ct+a))
    if PR == "R3": stamp(k, 0, True)
    e3 = r.emit(k, not NOSCHED, stamps=[90,92,94,96] if PR == "R3" else None)
    if PR == "R3": stamp(k, 5, True)
    if PROF:
        k.wait_all_vm()
        stamp(k, 5)
        k.raw("s_memrealtime s[100:101]")
        k.raw("s_waitcnt lgkmcnt(0)")
        for i in range(18):
            k.raw(f"v_writelane_b32 v20, s{84+i}, {i}")
        k.raw(f"s_lshl_b32 s80, s2, 2")
        k.raw(f"s_add_u32 s80, s80, s{S_WAVE}")
        k.raw(f"s_lshl_b32 s80, s80, 7")
        k.raw(f"s_add_u32 s80, s80, 0x100000")
        k.raw(f"v_lshlrev_b32 v21, 2, v{V_LANE}")
        k.raw(f"v_add_u32 v21, s80, v21")
        k.raw(f"v_cmp_gt_u32 vcc, 18, v{V_LANE}")
        k.raw("s_and_saveexec_b64 s[82:83], vcc")
        k.raw("global_store_dword v21, v20, s[10:11]")
    k.label("L_main_done")
    k.raw("s_endpgm")
    k.label("L_Ttail")
    k.raw(f"s_mul_i32 s{S_TMP}, s{S_WAVE}, 12288")
    k.raw(f"s_add_u32 s{S_TMP}, s{S_TMP}, {LDS_X}")
    k.raw(f"v_add_u32 v{T0}, s{S_TMP}, v{V_WRD}")
    for i in range(12):
        k.raw(f"ds_read_b128 v[{XP+4*i}:{XP+4*i+3}], v{T0} offset:{i*1024}")
    k.raw("s_waitcnt lgkmcnt(0)")
    for i in range(12):
        if i % 4 == 0 and i > 0:
            k.raw(f"s_add_u32 s{S_X1}, s{S_X1}, 4096")
        k.raw(f"buffer_store_dwordx4 v[{XP+4*i}:{XP+4*i+3}], v{V_WRD}, s[{SRD_W}:{SRD_W+3}], s{S_X1} offen offset:{(i%4)*1024}")
    k.raw("s_waitcnt vmcnt(0)")
    k.raw("s_barrier")
    k.raw(f"s_cmp_eq_u32 s{S_WAVE}, 0")
    k.raw("s_cbranch_scc0 L_main_done")
    k.raw("buffer_wbl2 sc1")
    k.raw("s_waitcnt vmcnt(0)")
    k.raw(f"v_mov_b32 v{T0}, s{S_SLOT}")
    k.raw(f"v_mov_b32 v{T0+1}, 1")
    k.raw(f"v_cmp_eq_u32 vcc, 0, v{V_LANE}")
    k.raw("s_and_saveexec_b64 s[82:83], vcc")
    k.raw(f"global_store_byte v{T0}, v{T0+1}, s[8:9] sc0 sc1")
    k.raw("s_endpgm")
    k.label("L_Shead")
    for c in range(8):
        k.raw(f"buffer_load_dwordx4 v[{HH+4*c}:{HH+4*c+3}], v{V_WG}, s[{SRD_W}:{SRD_W+3}], s{S_WOFF[c]} offen")
    for f in range(4):
        k.raw(f"buffer_load_dwordx4 v[{WF+4*f}:{WF+4*f+3}], v{V_WRD}, s[{SRD_W}:{SRD_W+3}], s{S_WOFF[8]} offen offset:{f*1024}")
    k.raw(f"v_mov_b32 v{T0}, s{S_SLOT}")
    k.label("L_Spoll")
    k.raw(f"global_load_ubyte v{T0+1}, v{T0}, s[8:9] sc0 sc1")
    k.raw("s_waitcnt vmcnt(0)")
    k.raw(f"v_readfirstlane_b32 s{S_TMP}, v{T0+1}")
    k.raw("s_nop 3")
    k.raw(f"s_cmp_eq_u32 s{S_TMP}, 0")
    k.raw("s_cbranch_scc0 L_Sgo")
    k.raw("s_sleep 8")
    k.raw("s_branch L_Spoll")
    k.label("L_Sgo")
    k.raw("buffer_inv sc1")
    k.raw("s_waitcnt vmcnt(0)")
    k.raw(f"s_mul_i32 s{S_TMP}, s{S_WAVE}, 12288")
    k.raw(f"s_add_u32 s{S_TMP}, s{S_TMP}, {LDS_X}")
    for i in range(12):
        k.raw(f"s_add_u32 m0, s{S_TMP}, {i*1024}")
        k.raw(f"s_add_u32 s{S_TMP+1}, s{S_X1}, {i*1024}")
        k.raw(f"buffer_load_dwordx4 v{V_WRD}, s[{SRD_W}:{SRD_W+3}], s{S_TMP+1} offen lds")
    k.raw("s_waitcnt vmcnt(0)")
    k.raw("s_branch L_R2")
    print("main counts:", k.counts, "est cycles", e1, e2, e3, file=sys.stderr)
    return k.text()

def main():
    s = HEADER + gen_fold() + gen_main()
    s += '.section .rodata,"a"\n.p2align 6\n' + kd("fold_kernel", 144, 40) + ".p2align 6\n" + kd(NAME + "_kernel", 256, 102)
    out = sys.argv[1] if len(sys.argv) > 1 else f"cdna_kernels/{NAME}.s"
    open(out, "w").write(s)

main()
```

```python
from asmlib import *

class Op:
    __slots__ = ("kind", "fn", "args", "kw", "R", "W", "idx", "preds", "succs", "prio", "t_issue", "npred")
    def __init__(self, kind, fn, args, kw, R, W):
        self.kind = kind; self.fn = fn; self.args = args; self.kw = kw
        self.R = set(R); self.W = set(W)
        self.preds = []; self.succs = []

import os
_P = dict(kv.split("=") for kv in os.environ.get("SCHED", "").split(",") if kv)
_V = float(_P.get("v", 4)); _M = float(_P.get("m", 8)); _DS = int(_P.get("ds", 140)); _ML = int(_P.get("ml", 64)); _MP = int(_P.get("mp", 32))
ISSUE = {"valu": _V, "trans": 2*_V, "dotc": _V, "dot": _V, "permlane": _V, "readlane": _V, "mfma": _M, "ds_read": 4, "ds_write": 8,
         "vload": 4, "vstore": 8, "salu": 4}
def lat(p, c, dep):
    if dep == "RAW":
        if p.kind == "mfma":
            if c.kind == "mfma" and c.args[3] == p.args[0] and not (set(R(c.args[1],4)+R(c.args[2],4)) & p.W):
                return 32
            return _ML
        if p.kind == "ds_read": return _DS
        if p.kind == "vload": return 3000
        if p.kind == "trans": return 12
        if p.kind == "dotc": return 8 if c.kind == "dotc" else 16
        if p.kind == "dot": return 16
        if p.kind in ("valu", "permlane"):
            if c.kind in ("mfma", "permlane"): return 12
            return 5
        return 4
    if dep == "WAR":
        if p.kind == "mfma" and p.args[3] is not None and c.kind != "mfma" and (set(R(p.args[3],16)) & c.W): return 32
        if p.kind == "vstore": return 12
        return ISSUE[p.kind]
    if dep == "WAW":
        if p.kind == "mfma" and c.kind != "mfma": return 64
        if p.kind == "ds_read": return 140
        if p.kind == "vload": return 3000
        return ISSUE[p.kind]

class Rec:
    def __init__(self):
        self.ops = []
    def _add(self, kind, fn, args, kw, R_, W_):
        self.ops.append(Op(kind, fn, args, kw, R_, W_))
    def valu(self, text, w=(), r=(), sw=(), sr_=(), kind="valu"):
        self._add(kind, "valu", (text,), dict(w=list(w), r=list(r), sw=list(sw), sr_=list(sr_), kind=kind),
                  list(r) + [("s", s) for s in sr_], list(w) + [("s", s) for s in sw])
    def mfma(self, d, a, b, c=None):
        self._add("mfma", "mfma", (d, a, b, c), {}, R(a,4)+R(b,4)+(R(c,16) if c is not None else []), R(d,16))
    def ds_read(self, d, n, addr, off):
        self._add("ds_read", "ds_read", (d, n, addr, off), {}, [addr], R(d,n))
    def ds_write(self, s, n, addr, off):
        self._add("ds_write", "ds_write", (s, n, addr, off), {}, R(s,n)+[addr], [])
    def buf_load(self, d, n, voff, srd, soff, off):
        self._add("vload", "buf_load", (d, n, voff, srd, soff, off), {}, [voff] + ([("s", soff)] if isinstance(soff, int) else []), R(d,n))
    def buf_store(self, s, n, voff, srd, soff, off):
        self._add("vstore", "buf_store", (s, n, voff, srd, soff, off), {}, R(s,n)+[voff] + ([("s", soff)] if isinstance(soff, int) else []), [])
    def salu(self, text, sw=(), sr_=()):
        self._add("salu", "salu", (text,), {}, [("s", s) for s in sr_] , [("s", s) for s in sw] + ["scc"])
    v2 = K.v2; v1 = K.v1; v3 = K.v3; cndmask = K.cndmask; pack = K.pack; swap32 = K.swap32
    def comment(self, t): pass

    def schedule(self, verbose=False):
        ops = self.ops
        lastw = {}; readers = {}
        for i, o in enumerate(ops):
            o.idx = i
            deps = {}
            for r in o.R:
                if r in lastw: deps[lastw[r]] = max(deps.get(lastw[r], 0), lat(ops[lastw[r]], o, "RAW"))
            for w in o.W:
                if w in lastw: deps[lastw[w]] = max(deps.get(lastw[w], 0), lat(ops[lastw[w]], o, "WAW"))
                for q in readers.get(w, ()):
                    if q != i: deps[q] = max(deps.get(q, 0), lat(ops[q], o, "WAR"))
            for r in o.R: readers.setdefault(r, []).append(i)
            for w in o.W:
                lastw[w] = i; readers[w] = []
            o.preds = list(deps.items())
            for p, l in o.preds: ops[p].succs.append((i, l))
        for o in reversed(ops):
            o.prio = ISSUE[o.kind] + max([ops[s].prio + l for s, l in o.succs], default=0)
            if o.kind == "vstore": o.prio += int(_P.get("st", 0))
            if o.kind == "ds_write": o.prio += int(_P.get("dw", 0))
        for o in ops: o.npred = len(o.preds); o.t_issue = None
        est = {o.idx: 0 for o in ops}
        ready = [o.idx for o in ops if o.npred == 0]
        t = 0; mfma_free = 0; order = []
        while ready:
            avail = [i for i in ready if est[i] <= t]
            pick = None
            if avail:
                m = [i for i in avail if ops[i].kind == "mfma"]
                nm = [i for i in avail if ops[i].kind != "mfma"]
                if m and t >= mfma_free:
                    pick = max(m, key=lambda i: (ops[i].prio, -i))
                elif nm:
                    pick = max(nm, key=lambda i: (ops[i].prio, -i))
                elif m:
                    t = mfma_free
                    continue
            if pick is None:
                tn = min(est[i] for i in ready)
                t = max(t + 1, tn)
                continue
            o = ops[pick]
            o.t_issue = t
            order.append(pick)
            ready.remove(pick)
            if o.kind == "mfma": mfma_free = t + _MP
            t += ISSUE[o.kind]
            for s, l in o.succs:
                est[s] = max(est[s], o.t_issue + l)
                ops[s].npred -= 1
                if ops[s].npred == 0: ready.append(s)
        assert len(order) == len(ops)
        self.est_cycles = t
        return [ops[i] for i in order]

    def emit(self, k, do_sched=True, stamps=None):
        seq = self.schedule() if do_sched else self.ops
        n = len(seq)
        marks = {}
        if stamps:
            for i, sg in enumerate(stamps):
                marks[(i+1)*n//(len(stamps)+1)] = sg
        import sys
        PRIO = [int(a[4:]) for a in sys.argv if a.startswith("prio")]
        PRIO = PRIO[0] if PRIO else 0
        hi = [False]*n
        if PRIO:
            last = -1000
            mf = [i for i, o in enumerate(seq) if o.kind == "mfma"]
            for a, b in zip(mf, mf[1:]):
                if b - a <= PRIO:
                    for i in range(a, b+1): hi[i] = True
        state = False
        for idx, o in enumerate(seq):
            if PRIO and hi[idx] != state:
                state = hi[idx]
                k.raw("s_setprio 2" if state else "s_setprio 0")
            if idx == n-1 and state:
                pass
            if idx in marks:
                k.raw(f"s_memtime s[{marks[idx]}:{marks[idx]+1}]")
                import sys
                print(f"stamp at op {idx}/{n} est t={o.t_issue}", file=sys.stderr)
            getattr(k, o.fn)(*o.args, **o.kw)
        if PRIO and state: k.raw("s_setprio 0")
        return getattr(self, "est_cycles", 0)
```

```python
import sys, math, struct
sys.path.insert(0, "gen")
from asmlib import *
from sched import Rec

NAME = "standalone__video_video_swin__vision"
T_STRIDE = 9633792
ROW = 43008
X_BYTES = 38535168
WS_STAGE = 36864
LDS_W = 0
LDS_X = 32768
LDS_TOTAL = 81920
NS = [int(a[2:]) for a in sys.argv[2:] if a.startswith("ns")]
NS = NS[0] if NS else 16
WS_X1 = 0x20000
GRID = [int(a[4:]) for a in sys.argv[2:] if a.startswith('grid')]
GRID = GRID[0] if GRID else None
PROF = len(sys.argv) > 2 and "prof" in sys.argv[2:]
PR = [a for a in sys.argv[2:] if a.startswith("R")]
PR = PR[0] if PR else None
NOSCHED = len(sys.argv) > 2 and "nosched" in sys.argv[2:]
ABL = set(a[4:] for a in sys.argv[2:] if a.startswith("abl_"))

HEADER = """; Kernarg layout for this problem (64 bytes, ptrs only, base s[0:1]):
;   offset   0: d_in[0] x  shape=(1, 4, 224, 224, 96) dtype=bfloat16 strides=(38535168, 9633792, 43008, 192, 2) contiguous=True
;   offset   8: d_in[1] wqkv_t  shape=(96, 288) dtype=bfloat16 strides=(576, 2) contiguous=True
;   offset  16: d_in[2] wo_t  shape=(96, 96) dtype=bfloat16 strides=(192, 2) contiguous=True
;   offset  24: d_in[3] wqkv_s  shape=(96, 288) dtype=bfloat16 strides=(576, 2) contiguous=True
;   offset  32: d_in[4] wo_s  shape=(96, 96) dtype=bfloat16 strides=(192, 2) contiguous=True
;   offset  40: d_out     shape=(1, 4, 224, 224, 96) dtype=bfloat16 (2 bytes/elem)
;   offset  48: d_debug   256 bytes
;   offset  56: d_ws      268435456 bytes workspace
; Two launches: (1) fold weights  M = scale*log2e*Wq*Wk^T and Wvo = Wv*Wo into MFMA fragment order in d_ws,
;               (2) fused temporal + spatial window attention, one workgroup per 8x8 window (all 4 frames);
;                   the last NS windows are split into a temporal-only and a spatial-only workgroup (hand-off
;                   through d_ws, flag bytes in d_debug) so that the load balances better over the CUs.
; (generated by gen/gen4.py)
; @launch kernel=fold_kernel grid=(36,1,1) block=(64,1,1) lds=0
; @launch kernel=%s_kernel grid=(%d,1,1) block=(256,1,1) lds=%d
.amdgcn_target "amdgcn-amd-amdhsa--gfx950"
.text
""" % (NAME, GRID or (784 + NS), LDS_TOTAL)

def kd(name, nv, ns):
    return f""".amdhsa_kernel {name}
  .amdhsa_next_free_vgpr {nv}
  .amdhsa_next_free_sgpr {ns}
  .amdhsa_accum_offset {(nv+3)//4*4}
  .amdhsa_group_segment_fixed_size 0
  .amdhsa_kernarg_size 64
  .amdhsa_user_sgpr_count 2
  .amdhsa_user_sgpr_kernarg_segment_ptr 1
  .amdhsa_system_sgpr_workgroup_id_x 1
.end_amdhsa_kernel
"""

def gen_fold():
    k = K()
    k.out.append(".globl fold_kernel\n.p2align 8\n.type fold_kernel,@function\nfold_kernel:")
    k.salu("s_cmp_ge_u32 s2, 36")
    k.salu("s_cbranch_scc1 L_fold_done")
    k.salu("s_load_dwordx4 s[4:7], s[0:1], 8")
    k.salu("s_load_dwordx4 s[8:11], s[0:1], 24")
    k.salu("s_load_dwordx2 s[12:13], s[0:1], 56")
    k.salu("s_mul_i32 s14, s2, 29")
    k.salu("s_lshr_b32 s14, s14, 8")
    k.salu("s_mul_i32 s15, s14, 9")
    k.salu("s_sub_u32 s15, s2, s15")
    k.salu("s_mul_i32 s16, s15, 86")
    k.salu("s_lshr_b32 s16, s16, 8")
    k.salu("s_mul_i32 s17, s16, 3")
    k.salu("s_sub_u32 s17, s15, s17")
    k.salu("s_and_b32 s18, s14, 1")
    k.salu("s_lshr_b32 s19, s14, 1")
    k.v2("v_and_b32", 1, "31", 0)
    k.v2("v_lshrrev_b32", 2, "5", 0)
    k.v2("v_and_b32", 3, "19", 1)
    k.v2("v_and_b32", 4, "4", 1)
    k.v2("v_lshlrev_b32", 4, "1", 4)
    k.v2("v_or_b32", 3, 3, 4)
    k.v2("v_and_b32", 4, "8", 1)
    k.v2("v_lshrrev_b32", 4, "1", 4)
    k.v2("v_or_b32", 3, 3, 4)
    k.raw("s_waitcnt lgkmcnt(0)")
    k.salu("s_cmp_eq_u32 s19, 0")
    k.salu("s_cselect_b32 s20, s4, s8")
    k.salu("s_cselect_b32 s21, s5, s9")
    k.salu("s_cselect_b32 s22, s6, s10")
    k.salu("s_cselect_b32 s23, s7, s11")
    k.salu("s_lshl_b32 s24, s16, 5")
    k.v2("v_add_u32", 5, "s24", 3)
    k.salu("s_movk_i32 s25, 576")
    k.valu("v_mul_lo_u32 v5, v5, s25", w=[5], r=[5])
    k.v2("v_lshlrev_b32", 6, "4", 2)
    k.v2("v_add_u32", 5, 5, 6)
    k.salu("s_mul_i32 s26, s18, 384")
    k.v2("v_add_u32", 5, "s26", 5)
    for s in range(6):
        k.raw(f"global_load_dwordx4 v[{16+4*s}:{19+4*s}], v5, s[20:21] offset:{32*s}")
    k.salu("s_lshl_b32 s24, s17, 5")
    k.v2("v_add_u32", 7, "s24", 3)
    k.salu("s_cmp_eq_u32 s18, 0")
    k.salu("s_cbranch_scc0 L_fold_wo")
    k.valu("v_mul_lo_u32 v8, v7, s25", w=[8], r=[7])
    k.v2("v_add_u32", 8, 8, 6)
    for s in range(6):
        k.raw(f"global_load_dwordx4 v[{40+4*s}:{43+4*s}], v8, s[20:21] offset:{192+32*s}")
    k.salu("s_branch L_fold_mm")
    k.label("L_fold_wo")
    k.v2("v_lshlrev_b32", 8, "1", 7)
    k.salu("s_movk_i32 s27, 1536")
    k.valu("v_mul_lo_u32 v9, v2, s27", w=[9], r=[2])
    k.v2("v_add_u32", 8, 8, 9)
    for s in range(6):
        if s > 0:
            k.v2("v_add_u32", 8, "0xc00", 8)
        for j in range(8):
            k.raw(f"global_load_ushort v{96+8*s+j}, v8, s[22:23] offset:{192*j}")
    k.raw("s_waitcnt vmcnt(0)")
    for i in range(24):
        k.raw(f"v_lshl_or_b32 v{40+i}, v{96+2*i+1}, 16, v{96+2*i}")
    k.nop(2)
    k.label("L_fold_mm")
    k.raw("s_waitcnt vmcnt(0)")
    for s in range(6):
        k.raw(f"v_mfma_f32_32x32x16_bf16 v[64:79], v[{16+4*s}:{19+4*s}], v[{40+4*s}:{43+4*s}], " + ("0" if s == 0 else "v[64:79]"))
    c0 = (96 ** -0.5) * math.log2(math.e)
    c0bits = struct.unpack("<I", struct.pack("<f", c0))[0]
    k.salu(f"s_mov_b32 s28, {c0bits:#x}")
    k.salu("s_cmp_eq_u32 s18, 0")
    k.salu("s_cselect_b32 s28, s28, 1.0")
    k.salu("s_mul_i32 s30, s16, 6")
    k.salu("s_add_u32 s30, s30, s17")
    k.salu("s_mul_i32 s31, s17, 6")
    k.salu("s_lshl_b32 s32, s16, 1")
    k.salu("s_add_u32 s31, s31, s32")
    k.salu("s_add_u32 s31, s31, 18")
    k.salu("s_cmp_eq_u32 s18, 0")
    k.salu("s_cselect_b32 s30, s30, s31")
    k.salu("s_movk_i32 s31, 3072")
    k.salu("s_movk_i32 s32, 1024")
    k.salu("s_cselect_b32 s31, s31, s32")
    k.salu("s_lshl_b32 s30, s30, 10")
    k.salu("s_mul_i32 s29, s19, 36864")
    k.salu("s_add_u32 s29, s29, s30")
    k.v2("v_lshlrev_b32", 10, "4", 0)
    k.v2("v_add_u32", 10, "s29", 10)
    k.v2("v_add_u32", 11, "s31", 10)
    k.nop(16)
    for i in range(16):
        k.v2("v_mul_f32", 64+i, "s28", 64+i)
    for i in range(8):
        k.pack(80+i, 64+2*i, 65+2*i)
    k.raw("global_store_dwordx4 v10, v[80:83], s[12:13]")
    k.raw("global_store_dwordx4 v11, v[84:87], s[12:13]")
    k.label("L_fold_done")
    k.raw("s_endpgm")
    return k.text()

XP, HH = 16, 64
A = [112 + 16*i for i in range(8)]
WF = 240
V_IVAL, V_LANE, V_XOFF, V_XW, V_XR, V_OOFF, V_WRD, V_WG = 0, 1, 2, 3, 4, 5, 6, 7
T0 = 8
SRD_X, SRD_O, SRD_W = 12, 16, 20
S_WAVE, S_BASE = 24, 27
S_ONES = 30
S_M1, S_M2, S_M3 = 32, 34, 36
S_MV = [38, 40, 42, 44]
S_SO0, S_SO1 = 46, 47
S_OO0, S_OO1 = 50, 51
S_TMP = 48
S_MODE, S_SLOT, S_X1 = 61, 62, 63
S_N1, S_N2, S_N3, S_B2 = 84, 86, 88, 90
S_IM = [64 + 2*i for i in range(8)]
S_WOFF = [52 + i for i in range(9)]

def ln_stats(k, xp, tmp):
    s0, s1, q0, q1, r, nb = R(tmp, 6)
    for i in range(24):
        s = (s0, s1)[i & 1]; q = (q0, q1)[i & 1]
        if i < 2:
            k.valu(f"v_dot2_f32_bf16 {vr(s)}, {vr(xp+i)}, s{S_ONES}, 0", w=[s], r=[xp+i], kind="dotc")
            k.valu(f"v_dot2_f32_bf16 {vr(q)}, {vr(xp+i)}, {vr(xp+i)}, 0", w=[q], r=[xp+i], kind="dotc")
        else:
            k.valu(f"v_dot2_f32_bf16 {vr(s)}, {vr(xp+i)}, s{S_ONES}, {vr(s)}", w=[s], r=[xp+i, s], kind="dotc")
            k.valu(f"v_dot2_f32_bf16 {vr(q)}, {vr(xp+i)}, {vr(xp+i)}, {vr(q)}", w=[q], r=[xp+i, q], kind="dotc")
    k.v2("v_add_f32", s0, s0, s1)
    k.v2("v_add_f32", q0, q0, q1)
    s, q = s0, q0
    k.swap32(s, q)
    k.v2("v_add_f32", s, s, q)
    k.v1("v_mov_b32", q, s)
    k.swap32(s, q)
    k.v2("v_mul_f32", s, "0x3c2aaaab", s)
    k.v2("v_mul_f32", q, "0x3c2aaaab", q)
    k.valu(f"v_fma_f32 {vr(q)}, -{vr(s)}, {vr(s)}, {vr(q)}", w=[q], r=[s, q])
    k.v2("v_max_f32", q, "0", q)
    k.v2("v_add_f32", q, "0x3727c5ac", q)
    k.v1("v_rsq_f32", r, q, kind="trans")
    k.valu(f"v_mul_f32 {vr(nb)}, -{vr(s)}, {vr(r)}", w=[nb], r=[s, r])
    return r, nb

def ln_stats_mfma(k, xp, tmp, gb, sb, ones):
    e = R(tmp, 4); q, t, r, nb = tmp+4, tmp+5, tmp+6, tmp+7
    for s in range(6):
        k.mfma(gb, xp+4*s, xp+4*s, None if s == 0 else gb)
        k.mfma(sb, ones, xp+4*s, None if s == 0 else sb)
    for a in range(4):
        k.cndmask(e[a], gb+a, gb+4+a, S_M1)
        k.cndmask(e[a], e[a], gb+8+a, S_M2)
        k.cndmask(e[a], e[a], gb+12+a, S_M3)
    k.cndmask(q, e[0], e[1], S_N1)
    k.cndmask(q, q, e[2], S_N2)
    k.cndmask(q, q, e[3], S_N3)
    k.v1("v_mov_b32", t, q)
    k.swap32(q, t)
    k.cndmask(q, q, t, S_B2)
    m = e[0]
    k.v2("v_mul_f32", m, "0x3c2aaaab", sb)
    k.v2("v_mul_f32", q, "0x3c2aaaab", q)
    k.valu(f"v_fma_f32 {vr(q)}, -{vr(m)}, {vr(m)}, {vr(q)}", w=[q], r=[m, q])
    k.v2("v_max_f32", q, "0", q)
    k.v2("v_add_f32", q, "0x3727c5ac", q)
    k.v1("v_rsq_f32", r, q, kind="trans")
    k.valu(f"v_mul_f32 {vr(nb)}, -{vr(m)}, {vr(r)}", w=[nb], r=[m, r])
    return r, nb

def ln_stats_valu(k, xp, tmp, tb):
    s0, s1, q0, q1, r, nb = R(tmp, 6)
    for i in range(24):
        lo = tb + 2*(i % 8); hi = lo + 1
        k.v2("v_lshlrev_b32", lo, "16", xp+i)
        k.v2("v_and_b32", hi, "0xffff0000", xp+i)
        if i == 0:
            k.v1("v_mov_b32", s0, lo); k.v1("v_mov_b32", s1, hi)
            k.v2("v_mul_f32", q0, lo, lo); k.v2("v_mul_f32", q1, hi, hi)
        else:
            k.v2("v_add_f32", s0, s0, lo); k.v2("v_add_f32", s1, s1, hi)
            k.valu(f"v_fmac_f32 {vr(q0)}, {vr(lo)}, {vr(lo)}", w=[q0], r=[q0, lo])
            k.valu(f"v_fmac_f32 {vr(q1)}, {vr(hi)}, {vr(hi)}", w=[q1], r=[q1, hi])
    k.v2("v_add_f32", s0, s0, s1)
    k.v2("v_add_f32", q0, q0, q1)
    s, q = s0, q0
    k.swap32(s, q)
    k.v2("v_add_f32", s, s, q)
    k.v1("v_mov_b32", q, s)
    k.swap32(s, q)
    k.v2("v_mul_f32", s, "0x3c2aaaab", s)
    k.v2("v_mul_f32", q, "0x3c2aaaab", q)
    k.valu(f"v_fma_f32 {vr(q)}, -{vr(s)}, {vr(s)}, {vr(q)}", w=[q], r=[s, q])
    k.v2("v_max_f32", q, "0", q)
    k.v2("v_add_f32", q, "0x3727c5ac", q)
    k.v1("v_rsq_f32", r, q, kind="trans")
    k.valu(f"v_mul_f32 {vr(nb)}, -{vr(s)}, {vr(r)}", w=[nb], r=[s, r])
    return r, nb

def ln_stats2(k):
    if "st_mfma" in sys.argv:
        ones = A[5]
        for i in range(4): k.v1("v_mov_b32", ones+i, f"s{S_ONES}")
        return [ln_stats_mfma(k, XP+24*j, A[6]+8*j, A[2*j], A[2*j+1], ones) for j in range(2)]
    if "st_valu" in sys.argv:
        return [ln_stats_valu(k, XP+24*j, A[6]+8*j, A[j]) for j in range(2)]
    return [ln_stats(k, XP+24*j, A[6]+8*j) for j in range(2)]

def ln_norm_kstep(k, xp, h, r, nb, tmp, s):
    for i in range(4*s, 4*s+4):
        if 'nonorm' in ABL: continue
        lo = tmp + 2*(i % 4); hi = lo + 1
        k.v2("v_lshlrev_b32", lo, "16", xp+i)
        k.v2("v_and_b32", hi, "0xffff0000", xp+i)
        k.v3("v_fma_f32", lo, lo, r, nb)
        k.v3("v_fma_f32", hi, hi, r, nb)
        k.pack(h+i, lo, hi)

class WFrag:
    def __init__(self, k): self.k = k
    def get(self, p):
        reg = WF + 4*(p % 4)
        if p >= 4 and 'nofrag' not in ABL:
            self.k.ds_read(reg, 4, V_WRD, LDS_W + (p-4)*1024)
        return reg

def pack_pair(k, a0, a1):
    for i in range(8): k.pack(a0+i, a0+2*i, a0+2*i+1)
    for i in range(8): k.pack(a0+8+i, a1+2*i, a1+2*i+1)

def ident(k, dst):
    if "vres" in sys.argv: return
    for i in range(8):
        k.cndmask(dst+i, "0", V_IVAL, S_IM[i])

def stage_front(k, wf, lnp):
    for s in range(6):
        for j in range(2):
            ln_norm_kstep(k, XP+24*j, HH+24*j, lnp[j][0], lnp[j][1], A[7]+8*j, s)
        for ct in range(3):
            w = wf.get(s*3+ct)
            for j in range(2):
                a = A[2*ct+j]
                k.mfma(a, w, HH+24*j+4*s, None if s == 0 else a)
    for ct in range(3):
        pack_pair(k, A[2*ct], A[2*ct+1])

def Gop(j, s):
    return A[2*(s//2)] + 8*j + 4*(s % 2)

def vgemm_ct(k, wf, ct, b0, b1):
    for s in range(6):
        w = wf.get(18+ct*6+s)
        for j, a in enumerate((b0, b1)):
            k.mfma(a, HH+24*j+4*s, w, None if s == 0 else a)
    pack_pair(k, b0, b1)

def stamp(k, idx, force=False):
    if not PROF: return
    if PR and not force: return
    k.raw(f"s_memtime s[{64+24+2*idx}:{65+24+2*idx}]")
    k.raw("s_waitcnt lgkmcnt(0)"); k.lgkm = []

def gen_main():
    if 'nomfma' in ABL:
        Rec.mfma = lambda self, d, a, b, c=None: None
    k = K()
    kn = NAME + "_kernel"
    k.out.append(f".globl {kn}\n.p2align 8\n.type {kn},@function\n{kn}:")
    k.salu(f"s_cmp_ge_u32 s2, {784+NS}")
    k.salu("s_cbranch_scc1 L_main_done")
    k.salu("s_load_dwordx2 s[4:5], s[0:1], 0")
    k.salu("s_load_dwordx4 s[8:11], s[0:1], 48")
    k.salu("s_load_dwordx2 s[6:7], s[0:1], 40")
    k.salu(f"s_mov_b32 s{S_MODE}, 1")
    k.salu(f"s_sub_u32 s3, s2, {NS}")
    k.salu(f"s_mov_b32 s{S_SLOT}, s2")
    k.salu(f"s_cmp_lt_u32 s2, {NS}")
    k.salu(f"s_cselect_b32 s{S_MODE}, 0, s{S_MODE}")
    k.salu(f"s_sub_u32 s28, s2, 784")
    k.salu(f"s_cmp_ge_u32 s2, 784")
    k.salu(f"s_cselect_b32 s{S_MODE}, 2, s{S_MODE}")
    k.salu(f"s_cselect_b32 s{S_SLOT}, s28, s{S_SLOT}")
    k.salu(f"s_add_u32 s28, s{S_SLOT}, {784-NS}")
    k.salu(f"s_cmp_eq_u32 s{S_MODE}, 1")
    k.salu(f"s_cselect_b32 s3, s3, s28")
    k.v2("v_lshrrev_b32", T0, "6", 0)
    k.v2("v_and_b32", V_LANE, "63", 0)
    k.valu(f"v_readfirstlane_b32 s{S_WAVE}, {vr(T0)}", r=[T0], sw=[S_WAVE], kind="readlane")
    k.salu("s_mul_i32 s25, s3, 2341")
    k.salu("s_lshr_b32 s25, s25, 16")
    k.salu("s_mul_i32 s26, s25, 28")
    k.salu("s_sub_u32 s26, s3, s26")
    k.salu(f"s_mul_i32 s{S_BASE}, s25, {8*ROW}")
    k.salu("s_mul_i32 s28, s26, 1536")
    k.salu(f"s_add_u32 s{S_BASE}, s{S_BASE}, s28")
    k.salu(f"s_mov_b32 s{S_ONES}, 0x3f803f80")
    hf, tok, t_, pos, q3 = T0+1, T0+2, T0+3, T0+4, T0+7
    k.v2("v_lshrrev_b32", hf, "5", V_LANE)
    k.v2("v_and_b32", tok, "31", V_LANE)
    k.v2("v_and_b32", t_, "3", V_LANE)
    k.v2("v_lshrrev_b32", pos, "2", tok)
    k.salu(f"s_mov_b32 s{S_TMP}, {T_STRIDE}")
    k.valu(f"v_mul_lo_u32 {vr(V_XOFF)}, {vr(t_)}, s{S_TMP}", w=[V_XOFF], r=[t_])
    k.v2("v_mul_u32_u24", T0+5, "0xc0", pos)
    k.v2("v_add_u32", V_XOFF, V_XOFF, T0+5)
    k.v2("v_lshlrev_b32", T0+5, "4", hf)
    k.v2("v_add_u32", V_XOFF, V_XOFF, T0+5)
    k.v2("v_lshlrev_b32", V_WG, "4", 0)
    k.v2("v_lshlrev_b32", V_WRD, "4", V_LANE)
    k.salu(f"s_mul_i32 s{S_SO0}, s{S_WAVE}, {2*ROW}")
    k.salu(f"s_add_u32 s{S_SO0}, s{S_SO0}, s{S_BASE}")
    k.salu(f"s_add_u32 s{S_SO1}, s{S_SO0}, {ROW}")
    k.raw("s_waitcnt lgkmcnt(0)")
    for base, ptr, n in ((SRD_X, 4, X_BYTES), (SRD_O, 6, X_BYTES), (SRD_W, 10, WS_X1 + NS*49152)):
        k.salu(f"s_mov_b32 s{base}, s{ptr}")
        k.salu(f"s_and_b32 s{base+1}, s{ptr+1}, 0xffff")
        k.salu(f"s_mov_b32 s{base+2}, {n}")
        k.salu(f"s_mov_b32 s{base+3}, 0x20000")
    if PROF:
        k.raw("s_memrealtime s[84:85]")
        k.raw("s_getreg_b32 s86, hwreg(HW_REG_HW_ID)")
        k.raw("s_getreg_b32 s87, hwreg(HW_REG_XCC_ID)")
    stamp(k, 0)
    k.salu(f"s_mul_i32 s{S_X1}, s{S_SLOT}, 49152")
    k.salu(f"s_mul_i32 s{S_TMP}, s{S_WAVE}, 12288")
    k.salu(f"s_add_u32 s{S_X1}, s{S_X1}, s{S_TMP}")
    k.salu(f"s_add_u32 s{S_X1}, s{S_X1}, {WS_X1}")
    k.salu(f"s_cmp_eq_u32 s{S_MODE}, 2")
    k.salu("s_cbranch_scc1 L_skipld")
    for c in range(8):
        k.salu(f"s_mov_b32 s{S_TMP}, {4096 + c*4096}")
        if 'now' not in ABL: k.buf_load(A[0]+4*c, 4, V_WG, SRD_W, S_TMP, 0)
    if "dma" in sys.argv:
        p1, p2, tt_ = A[4], A[4]+1, A[4]+2
        k.salu(f"s_mov_b32 s84, -1"); k.salu(f"s_mov_b32 s85, 0")
        k.v2("v_add_u32", p1, "0x400", V_WRD)
        k.v2("v_add_u32", tt_, str(ROW-512), V_WRD)
        k.cndmask(p1, tt_, p1, 84)
        k.v2("v_add_u32", p2, str(ROW+512), V_WRD)
        k.salu(f"s_mul_i32 s86, s{S_WAVE}, 12288")
        k.salu(f"s_add_u32 s86, s86, {LDS_X}")
        k.salu(f"s_mov_b32 s{S_TMP}, s{S_SO0}")
        for tt in range(4):
            for p, pr in enumerate((V_WRD, p1, p2)):
                k.salu(f"s_add_u32 m0, s86, {tt*3072 + p*1024}")
                if tt == 0:
                    v = pr; k.nop(1)
                else:
                    v = A[4]+2+(p & 1)
                    k.v2("v_xor_b32", v, str(tt << 4), pr)
                k.buf_load_lds(v, SRD_X, S_TMP, "xdma")
            if tt < 3:
                k.salu(f"s_add_u32 s{S_TMP}, s{S_TMP}, {T_STRIDE}")
        k.v2("v_xor_b32", A[4], hf, t_)
        k.v2("v_lshlrev_b32", A[4], "4", A[4])
        k.v2("v_mul_u32_u24", A[4]+1, "0xc0", pos)
        k.v2("v_add_u32", A[4], A[4], A[4]+1)
        k.v2("v_mul_u32_u24", A[4]+1, "0xc00", t_)
        k.v2("v_add_u32", A[4], A[4], A[4]+1)
        k.v2("v_add_u32", V_XOFF, "s86", A[4])
    else:
      for j in range(2):
        for s in range(6):
            if 'noload' not in ABL: k.buf_load(XP+24*j+4*s, 4, V_XOFF, SRD_X, S_SO0+j, 32*s)
    for f in range(4):
        k.buf_load(WF+4*f, 4, V_WRD, SRD_W, None, f*1024)
    k.label("L_skipld")
    for c in range(8):
        k.salu(f"s_mov_b32 s{S_WOFF[c]}, {WS_STAGE + 4096 + c*4096}")
    k.salu(f"s_mov_b32 s{S_WOFF[8]}, {WS_STAGE}")
    k.salu(f"s_mul_i32 s{S_OO0}, s{S_WAVE}, {T_STRIDE}")
    k.salu(f"s_add_u32 s{S_OO0}, s{S_OO0}, s{S_BASE}")
    k.salu(f"s_add_u32 s{S_OO1}, s{S_OO0}, {4*ROW}")
    k.v2("v_lshrrev_b32", q3, "3", tok)
    for a, m in ((1, S_M1), (2, S_M2), (3, S_M3)):
        k.valu(f"v_cmp_eq_u32 {sr(m,2)}, {a}, {vr(q3)}", r=[q3], sw=[m, m+1])
    if "st_mfma" in sys.argv:
        for a, m in ((1, S_N1), (2, S_N2), (3, S_N3)):
            k.valu(f"v_cmp_eq_u32 {sr(m,2)}, {a}, {vr(t_)}", r=[t_], sw=[m, m+1])
    k.v2("v_and_b32", T0+6, "1", pos)
    if "st_mfma" in sys.argv:
        k.valu(f"v_cmp_eq_u32 {sr(S_B2,2)}, 1, {vr(T0+6)}", r=[T0+6], sw=[S_B2, S_B2+1])
    k.v2("v_xor_b32", T0+6, T0+6, hf)
    k.v2("v_lshlrev_b32", T0+5, "2", T0+6)
    k.v2("v_add_u32", T0+5, T0+5, q3)
    for a in range(4):
        k.valu(f"v_cmp_eq_u32 {sr(S_MV[a],2)}, {a}, {vr(T0+5)}", r=[T0+5], sw=[S_MV[a], S_MV[a]+1])
    k.v2("v_lshlrev_b32", T0+6, "3", T0+6)
    k.v2("v_lshlrev_b32", T0+5, "1", q3)
    k.v2("v_add_u32", T0+6, T0+6, T0+5)
    k.valu(f"v_bfe_u32 {vr(T0+5)}, {vr(tok)}, 1, 1", w=[T0+5], r=[tok])
    k.v2("v_add_u32", T0+6, T0+6, T0+5)
    for i in range(8):
        k.valu(f"v_cmp_eq_u32 {sr(S_IM[i],2)}, {i}, {vr(T0+6)}", r=[T0+6], sw=[S_IM[i], S_IM[i]+1])
    k.v2("v_lshlrev_b32", T0+5, "1", t_)
    k.v2("v_xor_b32", T0+5, T0+5, pos)
    k.v2("v_lshlrev_b32", T0+6, "5", hf)
    k.v2("v_add_u32", T0+5, T0+5, T0+6)
    k.v2("v_lshlrev_b32", T0+5, "4", T0+5)
    k.v2("v_mul_u32_u24", T0+6, "0x3000", t_)
    k.v2("v_add_u32", V_XW, T0+5, T0+6)
    k.salu(f"s_lshr_b32 s{S_TMP}, s{S_WAVE}, 1")
    k.salu(f"s_mul_i32 s{S_TMP}, s{S_TMP}, 6144")
    k.salu(f"s_and_b32 s{S_TMP+1}, s{S_WAVE}, 1")
    k.salu(f"s_lshl_b32 s{S_TMP+1}, s{S_TMP+1}, 8")
    k.salu(f"s_add_u32 s{S_TMP}, s{S_TMP}, s{S_TMP+1}")
    k.salu(f"s_add_u32 s{S_TMP}, s{S_TMP}, {LDS_X}")
    k.v2("v_add_u32", V_XW, f"s{S_TMP}", V_XW)
    k.salu(f"s_lshl_b32 s{S_TMP}, s{S_WAVE}, 1")
    k.v2("v_xor_b32", V_XR, f"s{S_TMP}", V_LANE)
    k.v2("v_lshlrev_b32", V_XR, "4", V_XR)
    k.salu(f"s_mul_i32 s{S_TMP}, s{S_WAVE}, 12288")
    k.salu(f"s_add_u32 s{S_TMP}, s{S_TMP}, {LDS_X}")
    k.v2("v_add_u32", V_XR, f"s{S_TMP}", V_XR)
    k.salu(f"s_mov_b32 s{S_TMP}, {ROW}")
    k.valu(f"v_mul_lo_u32 {vr(V_OOFF)}, {vr(q3)}, s{S_TMP}", w=[V_OOFF], r=[q3])
    k.v2("v_and_b32", T0+5, "7", tok)
    k.v2("v_mul_u32_u24", T0+5, "0xc0", T0+5)
    k.v2("v_add_u32", V_OOFF, V_OOFF, T0+5)
    k.v2("v_lshlrev_b32", T0+5, "4", hf)
    k.v2("v_add_u32", V_OOFF, V_OOFF, T0+5)
    k.v2("v_and_b32", T0+5, "1", tok)
    k.v2("v_lshlrev_b32", T0+5, "4", T0+5)
    k.v1("v_mov_b32", T0+6, "0x3f80")
    k.v2("v_lshlrev_b32", V_IVAL, T0+5, T0+6)
    k.salu(f"s_cmp_eq_u32 s{S_MODE}, 2")
    k.salu("s_cbranch_scc1 L_Shead")
    for c in range(8):
        k.ds_write(A[0]+4*c, 4, V_WG, LDS_W + c*4096)
    if "dma" in sys.argv:
        k.v2("v_xor_b32", T0, "32", V_XOFF)
        k.wait_tag("xdma")
        for j in range(2):
            for s in range(6):
                k.ds_read(XP+24*j+4*s, 4, (V_XOFF, T0)[s & 1], j*1536 + (s >> 1)*64)
    k.wait_all_lgkm()
    k.barrier()
    stamp(k, 2)
    if PROF:
        k.wait_all_vm()
        stamp(k, 3)
    r = Rec(); wf = WFrag(r)
    lnp = ln_stats2(r)
    stage_front(r, wf, lnp)
    vgemm_ct(r, wf, 0, A[1], A[3])
    SA = [A[5], A[6]]
    for s in range(6):
        for j in range(2):
            r.mfma(SA[j], HH+24*j+4*s, Gop(j, s), None if s == 0 else SA[j])
    vgemm_ct(r, wf, 1, A[7], A[3])
    PT = A[4]
    for j in range(2):
        S = SA[j]
        e = [T0+0, T0+1, T0+2, T0+3]; m = T0+4; sm = T0+5
        for q in range(4):
            r.cndmask(e[q], S+q, S+4+q, S_M1)
            r.cndmask(e[q], e[q], S+8+q, S_M2)
            r.cndmask(e[q], e[q], S+12+q, S_M3)
        r.v3("v_max3_f32", m, e[0], e[1], e[2])
        r.v2("v_max_f32", m, m, e[3])
        for q in range(4): r.v2("v_sub_f32", e[q], e[q], m)
        for q in range(4): r.v1("v_exp_f32", e[q], e[q], kind="trans")
        r.v2("v_add_f32", sm, e[0], e[1])
        r.v2("v_add_f32", m, e[2], e[3])
        r.v2("v_add_f32", sm, sm, m)
        r.v1("v_rcp_f32", sm, sm, kind="trans")
        for q in range(4): r.v2("v_mul_f32", e[q], e[q], sm)
        r.pack(e[0], e[0], e[1])
        r.pack(e[1], e[2], e[3])
        for a in range(4):
            r.cndmask(PT+8*j+2*a, "0", e[0], S_MV[a])
            r.cndmask(PT+8*j+2*a+1, "0", e[1], S_MV[a])
    vgemm_ct(r, wf, 2, A[0], A[2])
    VV = [A[1], A[7], A[0]]
    for c in range(8):
        if 'now' not in ABL: r.buf_load(HH+4*c, 4, V_WG, SRD_W, S_WOFF[c], 0)
    for f in range(4):
        r.buf_load(WF+4*f, 4, V_WRD, SRD_W, S_WOFF[8], f*1024)
    ID = HH+32
    ident(r, ID)
    OA = [A[5], A[6], A[3], A[2]]
    n = 0
    for ct in range(3):
        for j in range(2):
            acc = OA[n % 4]; n += 1
            if "vres" in sys.argv:
                for i in range(8):
                    r.v2("v_lshlrev_b32", acc+2*i, "16", XP+24*j+8*ct+i)
                    r.v2("v_and_b32", acc+2*i+1, "0xffff0000", XP+24*j+8*ct+i)
            else:
                r.mfma(acc, ID, XP+24*j+8*ct, None)
                r.mfma(acc, ID+4, XP+24*j+8*ct+4, acc)
            for a in range(2):
                r.mfma(acc, VV[ct]+8*j+4*a, PT+8*j+4*a, acc)
            for i in range(8): r.pack(acc+i, acc+2*i, acc+2*i+1)
            for a in range(2): r.ds_write(acc+4*a, 4, V_XW, (2*ct+a)*1024 + 128*j)
    if PR == "R1": stamp(k, 0, True)
    e1 = r.emit(k, not NOSCHED, stamps=[90,92,94,96] if PR == "R1" else None)
    if PR == "R1": stamp(k, 5, True)
    k.wait_all_lgkm()
    k.barrier()
    stamp(k, 4)
    k.salu(f"s_cmp_eq_u32 s{S_MODE}, 0")
    k.salu("s_cbranch_scc1 L_Ttail")
    k.label("L_R2")
    r = Rec()
    for j in range(2):
        for s in range(6):
            r.ds_read(XP+24*j+4*s, 4, V_XR, j*6144 + s*1024)
    for c in range(8):
        r.ds_write(HH+4*c, 4, V_WG, LDS_W + c*4096)
    lnp = ln_stats2(r)
    e2 = r.emit(k, not NOSCHED)
    k.wait_all_lgkm()
    k.barrier()
    if "l2pf" in sys.argv:
        k.wait_all_vm()
        k.salu(f"s_add_u32 s87, s2, 512")
        k.salu(f"s_cmp_ge_u32 s87, 784")
        k.salu("s_cbranch_scc1 L_nopf")
        k.salu(f"s_sub_u32 s87, s87, {NS}")
        k.salu(f"s_mul_i32 s88, s87, 2341")
        k.salu(f"s_lshr_b32 s88, s88, 16")
        k.salu(f"s_mul_i32 s89, s88, 28")
        k.salu(f"s_sub_u32 s89, s87, s89")
        k.salu(f"s_mul_i32 s88, s88, {8*ROW}")
        k.salu(f"s_mul_i32 s89, s89, 1536")
        k.salu(f"s_add_u32 s88, s88, s89")
        k.salu(f"s_mul_i32 s89, s{S_WAVE}, {2*ROW}")
        k.salu(f"s_add_u32 s88, s88, s89")
        k.salu(f"s_mov_b32 s84, -1"); k.salu(f"s_mov_b32 s85, 0")
        p1, p2, tt_ = T0, T0+1, T0+2
        k.v2("v_add_u32", p1, "0x400", V_WRD)
        k.v2("v_add_u32", tt_, str(ROW-512), V_WRD)
        k.cndmask(p1, tt_, p1, 84)
        k.v2("v_add_u32", p2, str(ROW+512), V_WRD)
        k.salu(f"s_mul_i32 s86, s{S_WAVE}, 12288")
        k.salu(f"s_add_u32 s86, s86, {LDS_X}")
        for tt in range(4):
            for p, pr in enumerate((V_WRD, p1, p2)):
                k.salu(f"s_add_u32 m0, s86, {tt*3072 + p*1024}")
                k.nop(1)
                k.raw(f"buffer_load_dwordx4 {vr(pr)}, {sr(SRD_X,4)}, s88 offen lds")
            if tt < 3:
                k.salu(f"s_add_u32 s88, s88, {T_STRIDE}")
        k.label("L_nopf")
        k.nop(2)
    r = Rec(); wf = WFrag(r)
    stage_front(r, wf, lnp)
    SB = [[A[1], A[3]], [A[7], A[6]]]
    def sgemm(qt):
        for s in range(6):
            for kt in range(2):
                d = SB[qt][kt]
                r.mfma(d, HH+24*kt+4*s, Gop(qt, s), None if s == 0 else d)
    def softmax(qt):
        S = [SB[qt][0]+i for i in range(16)] + [SB[qt][1]+i for i in range(16)]
        m, t, sm, sm2 = T0+4*qt, T0+1+4*qt, T0+2+4*qt, T0+3+4*qt
        r.v3("v_max3_f32", m, S[0], S[1], S[2])
        r.v3("v_max3_f32", t, S[3], S[4], S[5])
        for i in range(6, 30, 4):
            r.v3("v_max3_f32", m, m, S[i], S[i+1])
            r.v3("v_max3_f32", t, t, S[i+2], S[i+3])
        r.v3("v_max3_f32", m, m, S[30], S[31])
        r.v2("v_max_f32", m, m, t)
        r.v1("v_mov_b32", t, m)
        r.swap32(m, t)
        r.v2("v_max_f32", m, m, t)
        for i in range(32):
            r.v2("v_sub_f32", S[i], S[i], m)
            r.v1("v_exp_f32", S[i], S[i], kind="trans")
        r.v2("v_add_f32", sm, S[0], S[1])
        r.v2("v_add_f32", sm2, S[2], S[3])
        for i in range(4, 32, 2):
            r.v2("v_add_f32", sm, sm, S[i])
            r.v2("v_add_f32", sm2, sm2, S[i+1])
        r.v2("v_add_f32", sm, sm, sm2)
        r.v1("v_mov_b32", t, sm)
        r.swap32(sm, t)
        r.v2("v_add_f32", sm, sm, t)
        r.v1("v_rcp_f32", sm, sm, kind="trans")
        for i in range(16):
            r.v2("v_mul_f32", S[2*i], S[2*i], sm)
            r.v2("v_mul_f32", S[2*i+1], S[2*i+1], sm)
            r.pack(SB[qt][0]+i, S[2*i], S[2*i+1])
    sgemm(0)
    vgemm_ct(r, wf, 0, A[5], A[6])
    sgemm(1)
    if 'nosm' not in ABL: softmax(0)
    vgemm_ct(r, wf, 1, A[0], A[2])
    if 'nosm' not in ABL: softmax(1)
    vgemm_ct(r, wf, 2, A[4], A[2])
    VV = [A[5], A[0], A[4]]
    ID = HH+32
    ident(r, ID)
    OA = [A[3], A[2], A[6], HH, HH+16]
    n = 0
    for qt in range(2):
        for ct in range(3):
            acc = OA[n % 5]; n += 1
            if "vres" in sys.argv:
                for i in range(8):
                    r.v2("v_lshlrev_b32", acc+2*i, "16", XP+24*qt+8*ct+i)
                    r.v2("v_and_b32", acc+2*i+1, "0xffff0000", XP+24*qt+8*ct+i)
            else:
                r.mfma(acc, ID, XP+24*qt+8*ct, None)
                r.mfma(acc, ID+4, XP+24*qt+8*ct+4, acc)
            for kt in range(2):
                for a in range(2):
                    r.mfma(acc, VV[ct]+8*kt+4*a, SB[qt][0]+8*kt+4*a, acc)
            for i in range(8): r.pack(acc+i, acc+2*i, acc+2*i+1)
            for a in range(2):
                if 'nostore' not in ABL or (ct==0 and a==0): r.buf_store(acc+4*a, 4, V_OOFF, SRD_O, S_OO0+qt, 32*(2*ct+a))
    if PR == "R3": stamp(k, 0, True)
    e3 = r.emit(k, not NOSCHED, stamps=[90,92,94,96] if PR == "R3" else None)
    if PR == "R3": stamp(k, 5, True)
    if PROF:
        k.wait_all_vm()
        stamp(k, 5)
        k.raw("s_memrealtime s[100:101]")
        k.raw("s_waitcnt lgkmcnt(0)")
        for i in range(18):
            k.raw(f"v_writelane_b32 v20, s{84+i}, {i}")
        k.raw(f"s_lshl_b32 s80, s2, 2")
        k.raw(f"s_add_u32 s80, s80, s{S_WAVE}")
        k.raw(f"s_lshl_b32 s80, s80, 7")
        k.raw(f"s_add_u32 s80, s80, 0x100000")
        k.raw(f"v_lshlrev_b32 v21, 2, v{V_LANE}")
        k.raw(f"v_add_u32 v21, s80, v21")
        k.raw(f"v_cmp_gt_u32 vcc, 18, v{V_LANE}")
        k.raw("s_and_saveexec_b64 s[82:83], vcc")
        k.raw("global_store_dword v21, v20, s[10:11]")
    k.label("L_main_done")
    k.raw("s_endpgm")
    k.label("L_Ttail")
    k.raw(f"s_mul_i32 s{S_TMP}, s{S_WAVE}, 12288")
    k.raw(f"s_add_u32 s{S_TMP}, s{S_TMP}, {LDS_X}")
    k.raw(f"v_add_u32 v{T0}, s{S_TMP}, v{V_WRD}")
    for i in range(12):
        k.raw(f"ds_read_b128 v[{XP+4*i}:{XP+4*i+3}], v{T0} offset:{i*1024}")
    k.raw("s_waitcnt lgkmcnt(0)")
    for i in range(12):
        if i % 4 == 0 and i > 0:
            k.raw(f"s_add_u32 s{S_X1}, s{S_X1}, 4096")
        k.raw(f"buffer_store_dwordx4 v[{XP+4*i}:{XP+4*i+3}], v{V_WRD}, s[{SRD_W}:{SRD_W+3}], s{S_X1} offen offset:{(i%4)*1024}" + (" sc0 sc1" if "wt" in sys.argv else ""))
    k.raw("s_waitcnt vmcnt(0)")
    k.raw("s_barrier")
    k.raw(f"s_cmp_eq_u32 s{S_WAVE}, 0")
    k.raw("s_cbranch_scc0 L_main_done")
    if "wt" not in sys.argv:
        k.raw("buffer_wbl2 sc1")
        k.raw("s_waitcnt vmcnt(0)")
    k.raw(f"v_mov_b32 v{T0}, s{S_SLOT}")
    k.raw(f"v_mov_b32 v{T0+1}, 1")
    k.raw(f"v_cmp_eq_u32 vcc, 0, v{V_LANE}")
    k.raw("s_and_saveexec_b64 s[82:83], vcc")
    k.raw(f"global_store_byte v{T0}, v{T0+1}, s[8:9] sc0 sc1")
    k.raw("s_endpgm")
    k.label("L_Shead")
    for c in range(8):
        k.raw(f"buffer_load_dwordx4 v[{HH+4*c}:{HH+4*c+3}], v{V_WG}, s[{SRD_W}:{SRD_W+3}], s{S_WOFF[c]} offen")
    for f in range(4):
        k.raw(f"buffer_load_dwordx4 v[{WF+4*f}:{WF+4*f+3}], v{V_WRD}, s[{SRD_W}:{SRD_W+3}], s{S_WOFF[8]} offen offset:{f*1024}")
    k.raw(f"v_mov_b32 v{T0}, s{S_SLOT}")
    k.label("L_Spoll")
    k.raw(f"global_load_ubyte v{T0+1}, v{T0}, s[8:9] sc0 sc1")
    k.raw("s_waitcnt vmcnt(0)")
    k.raw(f"v_readfirstlane_b32 s{S_TMP}, v{T0+1}")
    k.raw("s_nop 3")
    k.raw(f"s_cmp_eq_u32 s{S_TMP}, 0")
    k.raw("s_cbranch_scc0 L_Sgo")
    k.raw("s_sleep 8")
    k.raw("s_branch L_Spoll")
    k.label("L_Sgo")
    k.raw("buffer_inv sc1")
    k.raw("s_waitcnt vmcnt(0)")
    k.raw(f"s_mul_i32 s{S_TMP}, s{S_WAVE}, 12288")
    k.raw(f"s_add_u32 s{S_TMP}, s{S_TMP}, {LDS_X}")
    for i in range(12):
        k.raw(f"s_add_u32 m0, s{S_TMP}, {i*1024}")
        k.raw(f"s_add_u32 s{S_TMP+1}, s{S_X1}, {i*1024}")
        k.raw(f"buffer_load_dwordx4 v{V_WRD}, s[{SRD_W}:{SRD_W+3}], s{S_TMP+1} offen" + (" sc0 sc1" if "wt" in sys.argv else "") + " lds")
    k.raw("s_waitcnt vmcnt(0)")
    k.raw("s_branch L_R2")
    print("main counts:", k.counts, "est cycles", e1, e2, e3, file=sys.stderr)
    return k.text()

def main():
    s = HEADER + gen_fold() + gen_main()
    s += '.section .rodata,"a"\n.p2align 6\n' + kd("fold_kernel", 144, 40) + ".p2align 6\n" + kd(NAME + "_kernel", 256, 102)
    out = sys.argv[1] if len(sys.argv) > 1 else f"cdna_kernels/{NAME}.s"
    open(out, "w").write(s)

main()
```

```python
import sys, math, struct
sys.path.insert(0, "gen")
from asmlib import *
from sched import Rec

NAME = "standalone__video_video_swin__vision"
T_STRIDE = 9633792
ROW = 43008
X_BYTES = 38535168
WS_STAGE = 36864
LDS_W = 0
LDS_X = 32768
LDS_TOTAL = 81920
NS = [int(a[2:]) for a in sys.argv[2:] if a.startswith("ns")]
NS = NS[0] if NS else 16
WS_X1 = 0x20000
GRID = [int(a[4:]) for a in sys.argv[2:] if a.startswith('grid')]
GRID = GRID[0] if GRID else None
PROF = len(sys.argv) > 2 and "prof" in sys.argv[2:]
PR = [a for a in sys.argv[2:] if a.startswith("R")]
PR = PR[0] if PR else None
NOSCHED = len(sys.argv) > 2 and "nosched" in sys.argv[2:]
ABL = set(a[4:] for a in sys.argv[2:] if a.startswith("abl_"))

HEADER = """; Kernarg layout for this problem (64 bytes, ptrs only, base s[0:1]):
;   offset   0: d_in[0] x  shape=(1, 4, 224, 224, 96) dtype=bfloat16 strides=(38535168, 9633792, 43008, 192, 2) contiguous=True
;   offset   8: d_in[1] wqkv_t  shape=(96, 288) dtype=bfloat16 strides=(576, 2) contiguous=True
;   offset  16: d_in[2] wo_t  shape=(96, 96) dtype=bfloat16 strides=(192, 2) contiguous=True
;   offset  24: d_in[3] wqkv_s  shape=(96, 288) dtype=bfloat16 strides=(576, 2) contiguous=True
;   offset  32: d_in[4] wo_s  shape=(96, 96) dtype=bfloat16 strides=(192, 2) contiguous=True
;   offset  40: d_out     shape=(1, 4, 224, 224, 96) dtype=bfloat16 (2 bytes/elem)
;   offset  48: d_debug   256 bytes
;   offset  56: d_ws      268435456 bytes workspace
; Two launches: (1) fold weights  M = scale*log2e*Wq*Wk^T and Wvo = Wv*Wo into MFMA fragment order in d_ws,
;               (2) fused temporal + spatial window attention, one workgroup per 8x8 window (all 4 frames);
;                   the last NS windows are split into a temporal-only and a spatial-only workgroup (hand-off
;                   through d_ws, flag bytes in d_debug) so that the load balances better over the CUs.
; (generated by gen/gen4.py)
; @launch kernel=fold_kernel grid=(36,1,1) block=(64,1,1) lds=0
; @launch kernel=%s_kernel grid=(%d,1,1) block=(256,1,1) lds=%d
.amdgcn_target "amdgcn-amd-amdhsa--gfx950"
.text
""" % (NAME, GRID or (784 + NS), LDS_TOTAL)

def kd(name, nv, ns):
    return f""".amdhsa_kernel {name}
  .amdhsa_next_free_vgpr {nv}
  .amdhsa_next_free_sgpr {ns}
  .amdhsa_accum_offset {(nv+3)//4*4}
  .amdhsa_group_segment_fixed_size 0
  .amdhsa_kernarg_size 64
  .amdhsa_user_sgpr_count 2
  .amdhsa_user_sgpr_kernarg_segment_ptr 1
  .amdhsa_system_sgpr_workgroup_id_x 1
.end_amdhsa_kernel
"""

def gen_fold():
    k = K()
    k.out.append(".globl fold_kernel\n.p2align 8\n.type fold_kernel,@function\nfold_kernel:")
    k.salu("s_cmp_ge_u32 s2, 36")
    k.salu("s_cbranch_scc1 L_fold_done")
    k.salu("s_load_dwordx4 s[4:7], s[0:1], 8")
    k.salu("s_load_dwordx4 s[8:11], s[0:1], 24")
    k.salu("s_load_dwordx2 s[12:13], s[0:1], 56")
    k.salu("s_mul_i32 s14, s2, 29")
    k.salu("s_lshr_b32 s14, s14, 8")
    k.salu("s_mul_i32 s15, s14, 9")
    k.salu("s_sub_u32 s15, s2, s15")
    k.salu("s_mul_i32 s16, s15, 86")
    k.salu("s_lshr_b32 s16, s16, 8")
    k.salu("s_mul_i32 s17, s16, 3")
    k.salu("s_sub_u32 s17, s15, s17")
    k.salu("s_and_b32 s18, s14, 1")
    k.salu("s_lshr_b32 s19, s14, 1")
    k.v2("v_and_b32", 1, "31", 0)
    k.v2("v_lshrrev_b32", 2, "5", 0)
    k.v2("v_and_b32", 3, "19", 1)
    k.v2("v_and_b32", 4, "4", 1)
    k.v2("v_lshlrev_b32", 4, "1", 4)
    k.v2("v_or_b32", 3, 3, 4)
    k.v2("v_and_b32", 4, "8", 1)
    k.v2("v_lshrrev_b32", 4, "1", 4)
    k.v2("v_or_b32", 3, 3, 4)
    k.raw("s_waitcnt lgkmcnt(0)")
    k.salu("s_cmp_eq_u32 s19, 0")
    k.salu("s_cselect_b32 s20, s4, s8")
    k.salu("s_cselect_b32 s21, s5, s9")
    k.salu("s_cselect_b32 s22, s6, s10")
    k.salu("s_cselect_b32 s23, s7, s11")
    k.salu("s_lshl_b32 s24, s16, 5")
    k.v2("v_add_u32", 5, "s24", 3)
    k.salu("s_movk_i32 s25, 576")
    k.valu("v_mul_lo_u32 v5, v5, s25", w=[5], r=[5])
    k.v2("v_lshlrev_b32", 6, "4", 2)
    k.v2("v_add_u32", 5, 5, 6)
    k.salu("s_mul_i32 s26, s18, 384")
    k.v2("v_add_u32", 5, "s26", 5)
    for s in range(6):
        k.raw(f"global_load_dwordx4 v[{16+4*s}:{19+4*s}], v5, s[20:21] offset:{32*s}")
    k.salu("s_lshl_b32 s24, s17, 5")
    k.v2("v_add_u32", 7, "s24", 3)
    k.salu("s_cmp_eq_u32 s18, 0")
    k.salu("s_cbranch_scc0 L_fold_wo")
    k.valu("v_mul_lo_u32 v8, v7, s25", w=[8], r=[7])
    k.v2("v_add_u32", 8, 8, 6)
    for s in range(6):
        k.raw(f"global_load_dwordx4 v[{40+4*s}:{43+4*s}], v8, s[20:21] offset:{192+32*s}")
    k.salu("s_branch L_fold_mm")
    k.label("L_fold_wo")
    k.v2("v_lshlrev_b32", 8, "1", 7)
    k.salu("s_movk_i32 s27, 1536")
    k.valu("v_mul_lo_u32 v9, v2, s27", w=[9], r=[2])
    k.v2("v_add_u32", 8, 8, 9)
    for s in range(6):
        if s > 0:
            k.v2("v_add_u32", 8, "0xc00", 8)
        for j in range(8):
            k.raw(f"global_load_ushort v{96+8*s+j}, v8, s[22:23] offset:{192*j}")
    k.raw("s_waitcnt vmcnt(0)")
    for i in range(24):
        k.raw(f"v_lshl_or_b32 v{40+i}, v{96+2*i+1}, 16, v{96+2*i}")
    k.nop(2)
    k.label("L_fold_mm")
    k.raw("s_waitcnt vmcnt(0)")
    for s in range(6):
        k.raw(f"v_mfma_f32_32x32x16_bf16 v[64:79], v[{16+4*s}:{19+4*s}], v[{40+4*s}:{43+4*s}], " + ("0" if s == 0 else "v[64:79]"))
    c0 = (96 ** -0.5) * math.log2(math.e)
    c0bits = struct.unpack("<I", struct.pack("<f", c0))[0]
    k.salu(f"s_mov_b32 s28, {c0bits:#x}")
    k.salu("s_cmp_eq_u32 s18, 0")
    k.salu("s_cselect_b32 s28, s28, 1.0")
    k.salu("s_mul_i32 s30, s16, 6")
    k.salu("s_add_u32 s30, s30, s17")
    k.salu("s_mul_i32 s31, s17, 6")
    k.salu("s_lshl_b32 s32, s16, 1")
    k.salu("s_add_u32 s31, s31, s32")
    k.salu("s_add_u32 s31, s31, 18")
    k.salu("s_cmp_eq_u32 s18, 0")
    k.salu("s_cselect_b32 s30, s30, s31")
    k.salu("s_movk_i32 s31, 3072")
    k.salu("s_movk_i32 s32, 1024")
    k.salu("s_cselect_b32 s31, s31, s32")
    k.salu("s_lshl_b32 s30, s30, 10")
    k.salu("s_mul_i32 s29, s19, 36864")
    k.salu("s_add_u32 s29, s29, s30")
    k.v2("v_lshlrev_b32", 10, "4", 0)
    k.v2("v_add_u32", 10, "s29", 10)
    k.v2("v_add_u32", 11, "s31", 10)
    k.nop(16)
    for i in range(16):
        k.v2("v_mul_f32", 64+i, "s28", 64+i)
    for i in range(8):
        k.pack(80+i, 64+2*i, 65+2*i)
    k.raw("global_store_dwordx4 v10, v[80:83], s[12:13]")
    k.raw("global_store_dwordx4 v11, v[84:87], s[12:13]")
    k.label("L_fold_done")
    k.raw("s_endpgm")
    return k.text()

XP, HH = 16, 64
A = [112 + 16*i for i in range(8)]
WF = 240
V_IVAL, V_LANE, V_XOFF, V_XW, V_XR, V_OOFF, V_WRD, V_WG = 0, 1, 2, 3, 4, 5, 6, 7
T0 = 8
SRD_X, SRD_O, SRD_W = 12, 16, 20
S_WAVE, S_BASE = 24, 27
S_ONES = 30
S_HIM = 31
S_M1, S_M2, S_M3 = 32, 34, 36
S_MV = [38, 40, 42, 44]
S_SO0, S_SO1 = 46, 47
S_OO0, S_OO1 = 50, 51
S_TMP = 48
S_MODE, S_SLOT, S_X1 = 61, 62, 63
S_N1, S_N2, S_N3, S_B2 = 84, 86, 88, 90
S_IM = [64 + 2*i for i in range(8)]
S_WOFF = [52 + i for i in range(9)]

def ln_stats(k, xp, tmp):
    s0, s1, q0, q1, r, nb = R(tmp, 6)
    for a in (s0, s1, q0, q1): k.v1("v_mov_b32", a, "0")
    for i in range(24):
        s = (s0, s1)[i & 1]; q = (q0, q1)[i & 1]
        k.valu(f"v_dot2c_f32_bf16 {vr(s)}, s{S_ONES}, {vr(xp+i)}", w=[s], r=[xp+i, s], kind="dotc")
        k.valu(f"v_dot2c_f32_bf16 {vr(q)}, {vr(xp+i)}, {vr(xp+i)}", w=[q], r=[xp+i, q], kind="dotc")
    k.v2("v_add_f32", s0, s0, s1)
    k.v2("v_add_f32", q0, q0, q1)
    s, q = s0, q0
    k.swap32(s, q)
    k.v2("v_add_f32", s, s, q)
    k.v1("v_mov_b32", q, s)
    k.swap32(s, q)
    k.v2("v_mul_f32", s, "0x3c2aaaab", s)
    k.v2("v_mul_f32", q, "0x3c2aaaab", q)
    k.valu(f"v_fma_f32 {vr(q)}, -{vr(s)}, {vr(s)}, {vr(q)}", w=[q], r=[s, q])
    k.v2("v_max_f32", q, "0", q)
    k.v2("v_add_f32", q, "0x3727c5ac", q)
    k.v1("v_rsq_f32", r, q, kind="trans")
    k.valu(f"v_mul_f32 {vr(nb)}, -{vr(s)}, {vr(r)}", w=[nb], r=[s, r])
    return r, nb

def ln_stats_mfma(k, xp, tmp, gb, sb, ones):
    e = R(tmp, 4); q, t, r, nb = tmp+4, tmp+5, tmp+6, tmp+7
    for s in range(6):
        k.mfma(gb, xp+4*s, xp+4*s, None if s == 0 else gb)
        k.mfma(sb, ones, xp+4*s, None if s == 0 else sb)
    for a in range(4):
        k.cndmask(e[a], gb+a, gb+4+a, S_M1)
        k.cndmask(e[a], e[a], gb+8+a, S_M2)
        k.cndmask(e[a], e[a], gb+12+a, S_M3)
    k.cndmask(q, e[0], e[1], S_N1)
    k.cndmask(q, q, e[2], S_N2)
    k.cndmask(q, q, e[3], S_N3)
    k.v1("v_mov_b32", t, q)
    k.swap32(q, t)
    k.cndmask(q, q, t, S_B2)
    m = e[0]
    k.v2("v_mul_f32", m, "0x3c2aaaab", sb)
    k.v2("v_mul_f32", q, "0x3c2aaaab", q)
    k.valu(f"v_fma_f32 {vr(q)}, -{vr(m)}, {vr(m)}, {vr(q)}", w=[q], r=[m, q])
    k.v2("v_max_f32", q, "0", q)
    k.v2("v_add_f32", q, "0x3727c5ac", q)
    k.v1("v_rsq_f32", r, q, kind="trans")
    k.valu(f"v_mul_f32 {vr(nb)}, -{vr(m)}, {vr(r)}", w=[nb], r=[m, r])
    return r, nb

def ln_stats_valu(k, xp, tmp, tb):
    s0, s1, q0, q1, r, nb = R(tmp, 6)
    for i in range(24):
        lo = tb + 2*(i % 8); hi = lo + 1
        k.v2("v_lshlrev_b32", lo, "16", xp+i)
        k.v2("v_and_b32", hi, f"s{S_HIM}", xp+i)
        if i == 0:
            k.v1("v_mov_b32", s0, lo); k.v1("v_mov_b32", s1, hi)
            k.v2("v_mul_f32", q0, lo, lo); k.v2("v_mul_f32", q1, hi, hi)
        else:
            k.v2("v_add_f32", s0, s0, lo); k.v2("v_add_f32", s1, s1, hi)
            k.valu(f"v_fmac_f32 {vr(q0)}, {vr(lo)}, {vr(lo)}", w=[q0], r=[q0, lo])
            k.valu(f"v_fmac_f32 {vr(q1)}, {vr(hi)}, {vr(hi)}", w=[q1], r=[q1, hi])
    k.v2("v_add_f32", s0, s0, s1)
    k.v2("v_add_f32", q0, q0, q1)
    s, q = s0, q0
    k.swap32(s, q)
    k.v2("v_add_f32", s, s, q)
    k.v1("v_mov_b32", q, s)
    k.swap32(s, q)
    k.v2("v_mul_f32", s, "0x3c2aaaab", s)
    k.v2("v_mul_f32", q, "0x3c2aaaab", q)
    k.valu(f"v_fma_f32 {vr(q)}, -{vr(s)}, {vr(s)}, {vr(q)}", w=[q], r=[s, q])
    k.v2("v_max_f32", q, "0", q)
    k.v2("v_add_f32", q, "0x3727c5ac", q)
    k.v1("v_rsq_f32", r, q, kind="trans")
    k.valu(f"v_mul_f32 {vr(nb)}, -{vr(s)}, {vr(r)}", w=[nb], r=[s, r])
    return r, nb

def ln_stats2(k):
    if "st_mfma" in sys.argv:
        ones = A[5]
        for i in range(4): k.v1("v_mov_b32", ones+i, f"s{S_ONES}")
        return [ln_stats_mfma(k, XP+24*j, A[6]+8*j, A[2*j], A[2*j+1], ones) for j in range(2)]
    if "st_valu" in sys.argv:
        return [ln_stats_valu(k, XP+24*j, A[6]+8*j, A[j]) for j in range(2)]
    return [ln_stats(k, XP+24*j, A[6]+8*j) for j in range(2)]

def ln_norm_kstep(k, xp, h, r, nb, tmp, s):
    for i in range(4*s, 4*s+4):
        if 'nonorm' in ABL: continue
        lo = tmp + 2*(i % 4); hi = lo + 1
        k.v2("v_lshlrev_b32", lo, "16", xp+i)
        k.v2("v_and_b32", hi, f"s{S_HIM}", xp+i)
        k.v3("v_fma_f32", lo, lo, r, nb)
        k.v3("v_fma_f32", hi, hi, r, nb)
        k.pack(h+i, lo, hi)

class WFrag:
    def __init__(self, k): self.k = k
    def get(self, p):
        reg = WF + 4*(p % 4)
        if p >= 4 and 'nofrag' not in ABL:
            self.k.ds_read(reg, 4, V_WRD, LDS_W + (p-4)*1024)
        return reg

def pack_pair(k, a0, a1):
    for i in range(8): k.pack(a0+i, a0+2*i, a0+2*i+1)
    for i in range(8): k.pack(a0+8+i, a1+2*i, a1+2*i+1)

def ident(k, dst):
    if "vres" in sys.argv: return
    for i in range(8):
        k.cndmask(dst+i, "0", V_IVAL, S_IM[i])

def stage_front(k, wf, lnp):
    for s in range(6):
        for j in range(2):
            ln_norm_kstep(k, XP+24*j, HH+24*j, lnp[j][0], lnp[j][1], A[7]+8*j, s)
        for ct in range(3):
            w = wf.get(s*3+ct)
            for j in range(2):
                a = A[2*ct+j]
                k.mfma(a, w, HH+24*j+4*s, None if s == 0 else a)
    for ct in range(3):
        pack_pair(k, A[2*ct], A[2*ct+1])

def Gop(j, s):
    return A[2*(s//2)] + 8*j + 4*(s % 2)

def vgemm_ct(k, wf, ct, b0, b1):
    for s in range(6):
        w = wf.get(18+ct*6+s)
        for j, a in enumerate((b0, b1)):
            k.mfma(a, HH+24*j+4*s, w, None if s == 0 else a)
    pack_pair(k, b0, b1)

def stamp(k, idx, force=False):
    if not PROF: return
    if PR and not force: return
    k.raw(f"s_memtime s[{64+24+2*idx}:{65+24+2*idx}]")
    k.raw("s_waitcnt lgkmcnt(0)"); k.lgkm = []

def gen_main():
    if 'nomfma' in ABL:
        Rec.mfma = lambda self, d, a, b, c=None: None
    if 'novalu' in ABL:
        Rec.valu = lambda self, *a, **kw: None
    k = K()
    kn = NAME + "_kernel"
    k.out.append(f".globl {kn}\n.p2align 8\n.type {kn},@function\n{kn}:")
    k.salu(f"s_cmp_ge_u32 s2, {784+NS}")
    k.salu("s_cbranch_scc1 L_main_done")
    k.salu("s_load_dwordx2 s[4:5], s[0:1], 0")
    k.salu("s_load_dwordx4 s[8:11], s[0:1], 48")
    k.salu("s_load_dwordx2 s[6:7], s[0:1], 40")
    k.salu(f"s_mov_b32 s{S_MODE}, 1")
    k.salu(f"s_sub_u32 s3, s2, {NS}")
    k.salu(f"s_mov_b32 s{S_SLOT}, s2")
    k.salu(f"s_cmp_lt_u32 s2, {NS}")
    k.salu(f"s_cselect_b32 s{S_MODE}, 0, s{S_MODE}")
    k.salu(f"s_sub_u32 s28, s2, 784")
    k.salu(f"s_cmp_ge_u32 s2, 784")
    k.salu(f"s_cselect_b32 s{S_MODE}, 2, s{S_MODE}")
    k.salu(f"s_cselect_b32 s{S_SLOT}, s28, s{S_SLOT}")
    k.salu(f"s_add_u32 s28, s{S_SLOT}, {784-NS}")
    k.salu(f"s_cmp_eq_u32 s{S_MODE}, 1")
    k.salu(f"s_cselect_b32 s3, s3, s28")
    k.v2("v_lshrrev_b32", T0, "6", 0)
    k.v2("v_and_b32", V_LANE, "63", 0)
    k.valu(f"v_readfirstlane_b32 s{S_WAVE}, {vr(T0)}", r=[T0], sw=[S_WAVE], kind="readlane")
    k.salu("s_mul_i32 s25, s3, 2341")
    k.salu("s_lshr_b32 s25, s25, 16")
    k.salu("s_mul_i32 s26, s25, 28")
    k.salu("s_sub_u32 s26, s3, s26")
    k.salu(f"s_mul_i32 s{S_BASE}, s25, {8*ROW}")
    k.salu("s_mul_i32 s28, s26, 1536")
    k.salu(f"s_add_u32 s{S_BASE}, s{S_BASE}, s28")
    k.salu(f"s_mov_b32 s{S_ONES}, 0x3f803f80")
    k.salu(f"s_mov_b32 s{S_HIM}, 0xffff0000")
    hf, tok, t_, pos, q3 = T0+1, T0+2, T0+3, T0+4, T0+7
    k.v2("v_lshrrev_b32", hf, "5", V_LANE)
    k.v2("v_and_b32", tok, "31", V_LANE)
    k.v2("v_and_b32", t_, "3", V_LANE)
    k.v2("v_lshrrev_b32", pos, "2", tok)
    k.salu(f"s_mov_b32 s{S_TMP}, {T_STRIDE}")
    k.valu(f"v_mul_lo_u32 {vr(V_XOFF)}, {vr(t_)}, s{S_TMP}", w=[V_XOFF], r=[t_])
    k.v2("v_mul_u32_u24", T0+5, "0xc0", pos)
    k.v2("v_add_u32", V_XOFF, V_XOFF, T0+5)
    k.v2("v_lshlrev_b32", T0+5, "4", hf)
    k.v2("v_add_u32", V_XOFF, V_XOFF, T0+5)
    k.v2("v_lshlrev_b32", V_WG, "4", 0)
    k.v2("v_lshlrev_b32", V_WRD, "4", V_LANE)
    k.salu(f"s_mul_i32 s{S_SO0}, s{S_WAVE}, {2*ROW}")
    k.salu(f"s_add_u32 s{S_SO0}, s{S_SO0}, s{S_BASE}")
    k.salu(f"s_add_u32 s{S_SO1}, s{S_SO0}, {ROW}")
    k.raw("s_waitcnt lgkmcnt(0)")
    for base, ptr, n in ((SRD_X, 4, X_BYTES), (SRD_O, 6, X_BYTES), (SRD_W, 10, WS_X1 + NS*49152)):
        k.salu(f"s_mov_b32 s{base}, s{ptr}")
        k.salu(f"s_and_b32 s{base+1}, s{ptr+1}, 0xffff")
        k.salu(f"s_mov_b32 s{base+2}, {n}")
        k.salu(f"s_mov_b32 s{base+3}, 0x20000")
    if PROF:
        k.raw("s_memrealtime s[84:85]")
        k.raw("s_getreg_b32 s86, hwreg(HW_REG_HW_ID)")
        k.raw("s_getreg_b32 s87, hwreg(HW_REG_XCC_ID)")
    stamp(k, 0)
    k.salu(f"s_mul_i32 s{S_X1}, s{S_SLOT}, 49152")
    k.salu(f"s_mul_i32 s{S_TMP}, s{S_WAVE}, 12288")
    k.salu(f"s_add_u32 s{S_X1}, s{S_X1}, s{S_TMP}")
    k.salu(f"s_add_u32 s{S_X1}, s{S_X1}, {WS_X1}")
    k.salu(f"s_cmp_eq_u32 s{S_MODE}, 2")
    k.salu("s_cbranch_scc1 L_skipld")
    for c in range(8):
        k.salu(f"s_mov_b32 s{S_TMP}, {4096 + c*4096}")
        if 'now' not in ABL: k.buf_load(A[0]+4*c, 4, V_WG, SRD_W, S_TMP, 0)
    if "dma" in sys.argv:
        p1, p2, tt_ = A[4], A[4]+1, A[4]+2
        k.salu(f"s_mov_b32 s84, -1"); k.salu(f"s_mov_b32 s85, 0")
        k.v2("v_add_u32", p1, "0x400", V_WRD)
        k.v2("v_add_u32", tt_, str(ROW-512), V_WRD)
        k.cndmask(p1, tt_, p1, 84)
        k.v2("v_add_u32", p2, str(ROW+512), V_WRD)
        k.salu(f"s_mul_i32 s86, s{S_WAVE}, 12288")
        k.salu(f"s_add_u32 s86, s86, {LDS_X}")
        k.salu(f"s_mov_b32 s{S_TMP}, s{S_SO0}")
        for tt in range(4):
            for p, pr in enumerate((V_WRD, p1, p2)):
                k.salu(f"s_add_u32 m0, s86, {tt*3072 + p*1024}")
                if tt == 0:
                    v = pr; k.nop(1)
                else:
                    v = A[4]+2+(p & 1)
                    k.v2("v_xor_b32", v, str(tt << 4), pr)
                k.buf_load_lds(v, SRD_X, S_TMP, "xdma")
            if tt < 3:
                k.salu(f"s_add_u32 s{S_TMP}, s{S_TMP}, {T_STRIDE}")
        k.v2("v_xor_b32", A[4], hf, t_)
        k.v2("v_lshlrev_b32", A[4], "4", A[4])
        k.v2("v_mul_u32_u24", A[4]+1, "0xc0", pos)
        k.v2("v_add_u32", A[4], A[4], A[4]+1)
        k.v2("v_mul_u32_u24", A[4]+1, "0xc00", t_)
        k.v2("v_add_u32", A[4], A[4], A[4]+1)
        k.v2("v_add_u32", V_XOFF, "s86", A[4])
    else:
      for j in range(2):
        for s in range(6):
            if 'noload' not in ABL: k.buf_load(XP+24*j+4*s, 4, V_XOFF, SRD_X, S_SO0+j, 32*s)
    for f in range(4):
        k.buf_load(WF+4*f, 4, V_WRD, SRD_W, None, f*1024)
    k.label("L_skipld")
    for c in range(8):
        k.salu(f"s_mov_b32 s{S_WOFF[c]}, {WS_STAGE + 4096 + c*4096}")
    k.salu(f"s_mov_b32 s{S_WOFF[8]}, {WS_STAGE}")
    k.salu(f"s_mul_i32 s{S_OO0}, s{S_WAVE}, {T_STRIDE}")
    k.salu(f"s_add_u32 s{S_OO0}, s{S_OO0}, s{S_BASE}")
    k.salu(f"s_add_u32 s{S_OO1}, s{S_OO0}, {4*ROW}")
    k.v2("v_lshrrev_b32", q3, "3", tok)
    for a, m in ((1, S_M1), (2, S_M2), (3, S_M3)):
        k.valu(f"v_cmp_eq_u32 {sr(m,2)}, {a}, {vr(q3)}", r=[q3], sw=[m, m+1])
    if "st_mfma" in sys.argv:
        for a, m in ((1, S_N1), (2, S_N2), (3, S_N3)):
            k.valu(f"v_cmp_eq_u32 {sr(m,2)}, {a}, {vr(t_)}", r=[t_], sw=[m, m+1])
    k.v2("v_and_b32", T0+6, "1", pos)
    if "st_mfma" in sys.argv:
        k.valu(f"v_cmp_eq_u32 {sr(S_B2,2)}, 1, {vr(T0+6)}", r=[T0+6], sw=[S_B2, S_B2+1])
    k.v2("v_xor_b32", T0+6, T0+6, hf)
    k.v2("v_lshlrev_b32", T0+5, "2", T0+6)
    k.v2("v_add_u32", T0+5, T0+5, q3)
    for a in range(4):
        k.valu(f"v_cmp_eq_u32 {sr(S_MV[a],2)}, {a}, {vr(T0+5)}", r=[T0+5], sw=[S_MV[a], S_MV[a]+1])
    k.v2("v_lshlrev_b32", T0+6, "3", T0+6)
    k.v2("v_lshlrev_b32", T0+5, "1", q3)
    k.v2("v_add_u32", T0+6, T0+6, T0+5)
    k.valu(f"v_bfe_u32 {vr(T0+5)}, {vr(tok)}, 1, 1", w=[T0+5], r=[tok])
    k.v2("v_add_u32", T0+6, T0+6, T0+5)
    for i in range(8):
        k.valu(f"v_cmp_eq_u32 {sr(S_IM[i],2)}, {i}, {vr(T0+6)}", r=[T0+6], sw=[S_IM[i], S_IM[i]+1])
    k.v2("v_lshlrev_b32", T0+5, "1", t_)
    k.v2("v_xor_b32", T0+5, T0+5, pos)
    k.v2("v_lshlrev_b32", T0+6, "5", hf)
    k.v2("v_add_u32", T0+5, T0+5, T0+6)
    k.v2("v_lshlrev_b32", T0+5, "4", T0+5)
    k.v2("v_mul_u32_u24", T0+6, "0x3000", t_)
    k.v2("v_add_u32", V_XW, T0+5, T0+6)
    k.salu(f"s_lshr_b32 s{S_TMP}, s{S_WAVE}, 1")
    k.salu(f"s_mul_i32 s{S_TMP}, s{S_TMP}, 6144")
    k.salu(f"s_and_b32 s{S_TMP+1}, s{S_WAVE}, 1")
    k.salu(f"s_lshl_b32 s{S_TMP+1}, s{S_TMP+1}, 8")
    k.salu(f"s_add_u32 s{S_TMP}, s{S_TMP}, s{S_TMP+1}")
    k.salu(f"s_add_u32 s{S_TMP}, s{S_TMP}, {LDS_X}")
    k.v2("v_add_u32", V_XW, f"s{S_TMP}", V_XW)
    k.salu(f"s_lshl_b32 s{S_TMP}, s{S_WAVE}, 1")
    k.v2("v_xor_b32", V_XR, f"s{S_TMP}", V_LANE)
    k.v2("v_lshlrev_b32", V_XR, "4", V_XR)
    k.salu(f"s_mul_i32 s{S_TMP}, s{S_WAVE}, 12288")
    k.salu(f"s_add_u32 s{S_TMP}, s{S_TMP}, {LDS_X}")
    k.v2("v_add_u32", V_XR, f"s{S_TMP}", V_XR)
    k.salu(f"s_mov_b32 s{S_TMP}, {ROW}")
    k.valu(f"v_mul_lo_u32 {vr(V_OOFF)}, {vr(q3)}, s{S_TMP}", w=[V_OOFF], r=[q3])
    k.v2("v_and_b32", T0+5, "7", tok)
    k.v2("v_mul_u32_u24", T0+5, "0xc0", T0+5)
    k.v2("v_add_u32", V_OOFF, V_OOFF, T0+5)
    k.v2("v_lshlrev_b32", T0+5, "4", hf)
    k.v2("v_add_u32", V_OOFF, V_OOFF, T0+5)
    k.v2("v_and_b32", T0+5, "1", tok)
    k.v2("v_lshlrev_b32", T0+5, "4", T0+5)
    k.v1("v_mov_b32", T0+6, "0x3f80")
    k.v2("v_lshlrev_b32", V_IVAL, T0+5, T0+6)
    k.salu(f"s_cmp_eq_u32 s{S_MODE}, 2")
    k.salu("s_cbranch_scc1 L_Shead")
    for c in range(8):
        k.ds_write(A[0]+4*c, 4, V_WG, LDS_W + c*4096)
    if "dma" in sys.argv:
        k.v2("v_xor_b32", T0, "32", V_XOFF)
        k.wait_tag("xdma")
        for j in range(2):
            for s in range(6):
                k.ds_read(XP+24*j+4*s, 4, (V_XOFF, T0)[s & 1], j*1536 + (s >> 1)*64)
    k.wait_all_lgkm()
    k.barrier()
    stamp(k, 2)
    if PROF:
        k.wait_all_vm()
        stamp(k, 3)
    r = Rec(); wf = WFrag(r)
    lnp = ln_stats2(r)
    stage_front(r, wf, lnp)
    vgemm_ct(r, wf, 0, A[1], A[3])
    SA = [A[5], A[6]]
    for s in range(6):
        for j in range(2):
            r.mfma(SA[j], HH+24*j+4*s, Gop(j, s), None if s == 0 else SA[j])
    vgemm_ct(r, wf, 1, A[7], A[3])
    PT = A[4]
    for j in range(2):
        S = SA[j]
        e = [T0+0, T0+1, T0+2, T0+3]; m = T0+4; sm = T0+5
        for q in range(4):
            r.cndmask(e[q], S+q, S+4+q, S_M1)
            r.cndmask(e[q], e[q], S+8+q, S_M2)
            r.cndmask(e[q], e[q], S+12+q, S_M3)
        r.v3("v_max3_f32", m, e[0], e[1], e[2])
        r.v2("v_max_f32", m, m, e[3])
        for q in range(4): r.v2("v_sub_f32", e[q], e[q], m)
        for q in range(4): r.v1("v_exp_f32", e[q], e[q], kind="trans")
        r.v2("v_add_f32", sm, e[0], e[1])
        r.v2("v_add_f32", m, e[2], e[3])
        r.v2("v_add_f32", sm, sm, m)
        r.v1("v_rcp_f32", sm, sm, kind="trans")
        for q in range(4): r.v2("v_mul_f32", e[q], e[q], sm)
        r.pack(e[0], e[0], e[1])
        r.pack(e[1], e[2], e[3])
        for a in range(4):
            r.cndmask(PT+8*j+2*a, "0", e[0], S_MV[a])
            r.cndmask(PT+8*j+2*a+1, "0", e[1], S_MV[a])
    vgemm_ct(r, wf, 2, A[0], A[2])
    VV = [A[1], A[7], A[0]]
    for c in range(8):
        if 'now' not in ABL: r.buf_load(HH+4*c, 4, V_WG, SRD_W, S_WOFF[c], 0)
    for f in range(4):
        r.buf_load(WF+4*f, 4, V_WRD, SRD_W, S_WOFF[8], f*1024)
    ID = HH+32
    ident(r, ID)
    OA = [A[5], A[6], A[3], A[2]]
    n = 0
    for ct in range(3):
        for j in range(2):
            acc = OA[n % 4]; n += 1
            if "vres" in sys.argv:
                for i in range(8):
                    r.v2("v_lshlrev_b32", acc+2*i, "16", XP+24*j+8*ct+i)
                    r.v2("v_and_b32", acc+2*i+1, f"s{S_HIM}", XP+24*j+8*ct+i)
            else:
                r.mfma(acc, ID, XP+24*j+8*ct, None)
                r.mfma(acc, ID+4, XP+24*j+8*ct+4, acc)
            for a in range(2):
                r.mfma(acc, VV[ct]+8*j+4*a, PT+8*j+4*a, acc)
            for i in range(8): r.pack(acc+i, acc+2*i, acc+2*i+1)
            for a in range(2): r.ds_write(acc+4*a, 4, V_XW, (2*ct+a)*1024 + 128*j)
    if PR == "R1": stamp(k, 0, True)
    e1 = r.emit(k, not NOSCHED, stamps=[90,92,94,96] if PR == "R1" else None)
    if PR == "R1": stamp(k, 5, True)
    k.wait_all_lgkm()
    k.barrier()
    stamp(k, 4)
    k.salu(f"s_cmp_eq_u32 s{S_MODE}, 0")
    k.salu("s_cbranch_scc1 L_Ttail")
    k.label("L_R2")
    r = Rec()
    for j in range(2):
        for s in range(6):
            r.ds_read(XP+24*j+4*s, 4, V_XR, j*6144 + s*1024)
    for c in range(8):
        r.ds_write(HH+4*c, 4, V_WG, LDS_W + c*4096)
    lnp = ln_stats2(r)
    e2 = r.emit(k, not NOSCHED)
    k.wait_all_lgkm()
    k.barrier()
    if "l2pf" in sys.argv:
        k.wait_all_vm()
        k.salu(f"s_add_u32 s87, s2, 512")
        k.salu(f"s_cmp_ge_u32 s87, 784")
        k.salu("s_cbranch_scc1 L_nopf")
        k.salu(f"s_sub_u32 s87, s87, {NS}")
        k.salu(f"s_mul_i32 s88, s87, 2341")
        k.salu(f"s_lshr_b32 s88, s88, 16")
        k.salu(f"s_mul_i32 s89, s88, 28")
        k.salu(f"s_sub_u32 s89, s87, s89")
        k.salu(f"s_mul_i32 s88, s88, {8*ROW}")
        k.salu(f"s_mul_i32 s89, s89, 1536")
        k.salu(f"s_add_u32 s88, s88, s89")
        k.salu(f"s_mul_i32 s89, s{S_WAVE}, {2*ROW}")
        k.salu(f"s_add_u32 s88, s88, s89")
        k.salu(f"s_mov_b32 s84, -1"); k.salu(f"s_mov_b32 s85, 0")
        p1, p2, tt_ = T0, T0+1, T0+2
        k.v2("v_add_u32", p1, "0x400", V_WRD)
        k.v2("v_add_u32", tt_, str(ROW-512), V_WRD)
        k.cndmask(p1, tt_, p1, 84)
        k.v2("v_add_u32", p2, str(ROW+512), V_WRD)
        k.salu(f"s_mul_i32 s86, s{S_WAVE}, 12288")
        k.salu(f"s_add_u32 s86, s86, {LDS_X}")
        for tt in range(4):
            for p, pr in enumerate((V_WRD, p1, p2)):
                k.salu(f"s_add_u32 m0, s86, {tt*3072 + p*1024}")
                k.nop(1)
                k.raw(f"buffer_load_dwordx4 {vr(pr)}, {sr(SRD_X,4)}, s88 offen lds")
            if tt < 3:
                k.salu(f"s_add_u32 s88, s88, {T_STRIDE}")
        k.label("L_nopf")
        k.nop(2)
    r = Rec(); wf = WFrag(r)
    stage_front(r, wf, lnp)
    SB = [[A[1], A[3]], [A[7], A[6]]]
    def sgemm(qt):
        for s in range(6):
            for kt in range(2):
                d = SB[qt][kt]
                r.mfma(d, HH+24*kt+4*s, Gop(qt, s), None if s == 0 else d)
    def softmax(qt):
        S = [SB[qt][0]+i for i in range(16)] + [SB[qt][1]+i for i in range(16)]
        m, t, sm, sm2 = T0+4*qt, T0+1+4*qt, T0+2+4*qt, T0+3+4*qt
        r.v3("v_max3_f32", m, S[0], S[1], S[2])
        r.v3("v_max3_f32", t, S[3], S[4], S[5])
        for i in range(6, 30, 4):
            r.v3("v_max3_f32", m, m, S[i], S[i+1])
            r.v3("v_max3_f32", t, t, S[i+2], S[i+3])
        r.v3("v_max3_f32", m, m, S[30], S[31])
        r.v2("v_max_f32", m, m, t)
        r.v1("v_mov_b32", t, m)
        r.swap32(m, t)
        r.v2("v_max_f32", m, m, t)
        for i in range(32):
            r.v2("v_sub_f32", S[i], S[i], m)
            r.v1("v_exp_f32", S[i], S[i], kind="trans")
        r.v2("v_add_f32", sm, S[0], S[1])
        r.v2("v_add_f32", sm2, S[2], S[3])
        for i in range(4, 32, 2):
            r.v2("v_add_f32", sm, sm, S[i])
            r.v2("v_add_f32", sm2, sm2, S[i+1])
        r.v2("v_add_f32", sm, sm, sm2)
        r.v1("v_mov_b32", t, sm)
        r.swap32(sm, t)
        r.v2("v_add_f32", sm, sm, t)
        r.v1("v_rcp_f32", sm, sm, kind="trans")
        for i in range(16):
            r.v2("v_mul_f32", S[2*i], S[2*i], sm)
            r.v2("v_mul_f32", S[2*i+1], S[2*i+1], sm)
            r.pack(SB[qt][0]+i, S[2*i], S[2*i+1])
    sgemm(0)
    vgemm_ct(r, wf, 0, A[5], A[6])
    sgemm(1)
    if 'nosm' not in ABL: softmax(0)
    vgemm_ct(r, wf, 1, A[0], A[2])
    if 'nosm' not in ABL: softmax(1)
    vgemm_ct(r, wf, 2, A[4], A[2])
    VV = [A[5], A[0], A[4]]
    ID = HH+32
    ident(r, ID)
    OA = [A[3], A[2], A[6], HH, HH+16]
    n = 0
    for qt in range(2):
        for ct in range(3):
            acc = OA[n % 5]; n += 1
            if "vres" in sys.argv:
                for i in range(8):
                    r.v2("v_lshlrev_b32", acc+2*i, "16", XP+24*qt+8*ct+i)
                    r.v2("v_and_b32", acc+2*i+1, f"s{S_HIM}", XP+24*qt+8*ct+i)
            else:
                r.mfma(acc, ID, XP+24*qt+8*ct, None)
                r.mfma(acc, ID+4, XP+24*qt+8*ct+4, acc)
            for kt in range(2):
                for a in range(2):
                    r.mfma(acc, VV[ct]+8*kt+4*a, SB[qt][0]+8*kt+4*a, acc)
            for i in range(8): r.pack(acc+i, acc+2*i, acc+2*i+1)
            for a in range(2):
                if 'nostore' not in ABL or (ct==0 and a==0): r.buf_store(acc+4*a, 4, V_OOFF, SRD_O, S_OO0+qt, 32*(2*ct+a))
    if PR == "R3": stamp(k, 0, True)
    e3 = r.emit(k, not NOSCHED, stamps=[90,92,94,96] if PR == "R3" else None)
    if PR == "R3": stamp(k, 5, True)
    if PROF:
        k.wait_all_vm()
        stamp(k, 5)
        k.raw("s_memrealtime s[100:101]")
        k.raw("s_waitcnt lgkmcnt(0)")
        for i in range(18):
            k.raw(f"v_writelane_b32 v20, s{84+i}, {i}")
        k.raw(f"s_lshl_b32 s80, s2, 2")
        k.raw(f"s_add_u32 s80, s80, s{S_WAVE}")
        k.raw(f"s_lshl_b32 s80, s80, 7")
        k.raw(f"s_add_u32 s80, s80, 0x100000")
        k.raw(f"v_lshlrev_b32 v21, 2, v{V_LANE}")
        k.raw(f"v_add_u32 v21, s80, v21")
        k.raw(f"v_cmp_gt_u32 vcc, 18, v{V_LANE}")
        k.raw("s_and_saveexec_b64 s[82:83], vcc")
        k.raw("global_store_dword v21, v20, s[10:11]")
    if "l2pf" in sys.argv: k.raw("s_waitcnt vmcnt(12)")
    k.label("L_main_done")
    k.raw("s_endpgm")
    k.label("L_Ttail")
    k.raw(f"s_mul_i32 s{S_TMP}, s{S_WAVE}, 12288")
    k.raw(f"s_add_u32 s{S_TMP}, s{S_TMP}, {LDS_X}")
    k.raw(f"v_add_u32 v{T0}, s{S_TMP}, v{V_WRD}")
    for i in range(12):
        k.raw(f"ds_read_b128 v[{XP+4*i}:{XP+4*i+3}], v{T0} offset:{i*1024}")
    k.raw("s_waitcnt lgkmcnt(0)")
    for i in range(12):
        if i % 4 == 0 and i > 0:
            k.raw(f"s_add_u32 s{S_X1}, s{S_X1}, 4096")
        k.raw(f"buffer_store_dwordx4 v[{XP+4*i}:{XP+4*i+3}], v{V_WRD}, s[{SRD_W}:{SRD_W+3}], s{S_X1} offen offset:{(i%4)*1024}" + (" sc0 sc1" if "wt" in sys.argv else ""))
    k.raw("s_waitcnt vmcnt(0)")
    k.raw("s_barrier")
    k.raw(f"s_cmp_eq_u32 s{S_WAVE}, 0")
    k.raw("s_cbranch_scc0 L_main_done")
    if "wt" not in sys.argv:
        k.raw("buffer_wbl2 sc1")
        k.raw("s_waitcnt vmcnt(0)")
    k.raw(f"v_mov_b32 v{T0}, s{S_SLOT}")
    k.raw(f"v_mov_b32 v{T0+1}, 1")
    k.raw(f"v_cmp_eq_u32 vcc, 0, v{V_LANE}")
    k.raw("s_and_saveexec_b64 s[82:83], vcc")
    k.raw(f"global_store_byte v{T0}, v{T0+1}, s[8:9] sc0 sc1")
    k.raw("s_endpgm")
    k.label("L_Shead")
    for c in range(8):
        k.raw(f"buffer_load_dwordx4 v[{HH+4*c}:{HH+4*c+3}], v{V_WG}, s[{SRD_W}:{SRD_W+3}], s{S_WOFF[c]} offen")
    for f in range(4):
        k.raw(f"buffer_load_dwordx4 v[{WF+4*f}:{WF+4*f+3}], v{V_WRD}, s[{SRD_W}:{SRD_W+3}], s{S_WOFF[8]} offen offset:{f*1024}")
    k.raw(f"v_mov_b32 v{T0}, s{S_SLOT}")
    k.label("L_Spoll")
    k.raw(f"global_load_ubyte v{T0+1}, v{T0}, s[8:9] sc0 sc1")
    k.raw("s_waitcnt vmcnt(0)")
    k.raw(f"v_readfirstlane_b32 s{S_TMP}, v{T0+1}")
    k.raw("s_nop 3")
    k.raw(f"s_cmp_eq_u32 s{S_TMP}, 0")
    k.raw("s_cbranch_scc0 L_Sgo")
    k.raw("s_sleep 8")
    k.raw("s_branch L_Spoll")
    k.label("L_Sgo")
    k.raw("buffer_inv sc1")
    k.raw("s_waitcnt vmcnt(0)")
    k.raw(f"s_mul_i32 s{S_TMP}, s{S_WAVE}, 12288")
    k.raw(f"s_add_u32 s{S_TMP}, s{S_TMP}, {LDS_X}")
    for i in range(12):
        k.raw(f"s_add_u32 m0, s{S_TMP}, {i*1024}")
        k.raw(f"s_add_u32 s{S_TMP+1}, s{S_X1}, {i*1024}")
        k.raw(f"buffer_load_dwordx4 v{V_WRD}, s[{SRD_W}:{SRD_W+3}], s{S_TMP+1} offen" + (" sc0 sc1" if "wt" in sys.argv else "") + " lds")
    k.raw("s_waitcnt vmcnt(0)")
    k.raw("s_branch L_R2")
    print("main counts:", k.counts, "est cycles", e1, e2, e3, file=sys.stderr)
    return k.text()

def main():
    s = HEADER + gen_fold() + gen_main()
    s += '.section .rodata,"a"\n.p2align 6\n' + kd("fold_kernel", 144, 40) + ".p2align 6\n" + kd(NAME + "_kernel", 256, 102)
    out = sys.argv[1] if len(sys.argv) > 1 else f"cdna_kernels/{NAME}.s"
    open(out, "w").write(s)

main()
```

```python
def vr(a, n=1):
    return f"v{a}" if n == 1 else f"v[{a}:{a+n-1}]"
def sr(a, n=1):
    return f"s{a}" if n == 1 else f"s[{a}:{a+n-1}]"
def R(a, n=1):
    return list(range(a, a+n))

class K:
    def __init__(self):
        self.out = []
        self.pos = 0
        self.valu_w = {}
        self.trans_w = {}
        self.dot_w = {}
        self.mfma_w = {}
        self.mfma_c = {}
        self.store_r = {}
        self.sgpr_w = {}
        self.lgkm = []
        self.vm = []
        self.counts = {}

    def raw(self, text, ws=1):
        self.out.append("  " + text)
        self.pos += ws
    def comment(self, t):
        self.out.append("  ; " + t)
    def label(self, t):
        self.out.append(t + ":")
    def nop(self, n):
        while n > 0:
            k = min(n, 16)
            self.raw(f"s_nop {k-1}", ws=k)
            self.counts['nop'] = self.counts.get('nop', 0) + 1
            n -= k
    def _need(self, prodpos, ws):
        have = self.pos - prodpos - 1
        if have < ws:
            self.nop(ws - have)
    def _wait_mem(self, regs):
        regs = set(regs)
        idx = -1
        for i, d in enumerate(self.lgkm):
            if d & regs: idx = i
        need_l = None
        if idx >= 0:
            n = len(self.lgkm) - 1 - idx
            need_l = min(n, 15)
            self.lgkm = self.lgkm[len(self.lgkm)-need_l:] if need_l > 0 else []
        idx = -1
        for i, d in enumerate(self.vm):
            if d & regs: idx = i
        need_v = None
        if idx >= 0:
            n = len(self.vm) - 1 - idx
            need_v = min(n, 63)
            self.vm = self.vm[len(self.vm)-need_v:] if need_v > 0 else []
        if need_l is not None or need_v is not None:
            t = "s_waitcnt"
            if need_v is not None: t += f" vmcnt({need_v})"
            if need_l is not None: t += f" lgkmcnt({need_l})"
            self.raw(t)
    def wait_all_lgkm(self):
        self.raw("s_waitcnt lgkmcnt(0)"); self.lgkm = []
    def wait_all_vm(self):
        self.raw("s_waitcnt vmcnt(0)"); self.vm = []
    def barrier(self):
        self.raw("s_barrier")

    def _mfma_d_hazard(self, regs, ws=12):
        for r in regs:
            if r in self.mfma_w:
                self._need(self.mfma_w[r][0], ws)

    def valu(self, text, w=(), r=(), sw=(), sr_=(), kind="valu"):
        w = list(w); r = list(r)
        self._wait_mem(w + r)
        self._mfma_d_hazard(w + r)
        for x in w:
            if x in self.mfma_c: self._need(self.mfma_c[x], 7)
            if x in self.store_r: self._need(self.store_r[x], 2)
        for x in r:
            if kind != "trans" and x in self.trans_w: self._need(self.trans_w[x], 1)
            if x in self.trans_w and kind == "trans": pass
            if x in self.dot_w and kind != "dotc": self._need(self.dot_w[x], 3)
            if kind == "permlane" and x in self.valu_w: self._need(self.valu_w[x], 2)
            if kind == "readlane" and x in self.valu_w: self._need(self.valu_w[x], 1)
        for x in w:
            if x in self.dot_w and kind != "dotc": self._need(self.dot_w[x], 3)
        for s in sr_:
            if s in self.sgpr_w: self._need(self.sgpr_w[s], 2)
        self.raw(text)
        p = self.pos - 1
        for x in w:
            self.valu_w[x] = p
            self.trans_w.pop(x, None); self.dot_w.pop(x, None); self.mfma_w.pop(x, None)
            if kind == "trans": self.trans_w[x] = p
            if kind in ("dotc", "dot"): self.dot_w[x] = p
        for s in sw: self.sgpr_w[s] = p
        self.counts[kind] = self.counts.get(kind, 0) + 1

    def mfma(self, d, a, b, c=None):
        D = R(d, 16); A = R(a, 4); B = R(b, 4); C = R(c, 16) if c is not None else []
        self._wait_mem(D + A + B + C)
        for x in A + B + C:
            if x in self.valu_w: self._need(self.valu_w[x], 2)
            if x in self.dot_w: self._need(self.dot_w[x], 3)
        for x in A + B:
            if x in self.mfma_w: self._need(self.mfma_w[x][0], 12)
        for x in C:
            if x in self.mfma_w:
                if self.mfma_w[x][1] != (c, 16): self._need(self.mfma_w[x][0], 10)
        cs = "0" if c is None else vr(c, 16)
        self.raw(f"v_mfma_f32_32x32x16_bf16 {vr(d,16)}, {vr(a,4)}, {vr(b,4)}, {cs}")
        p = self.pos - 1
        for x in D:
            self.mfma_w[x] = (p, (d, 16))
            self.valu_w.pop(x, None); self.trans_w.pop(x, None); self.dot_w.pop(x, None)
        for x in C: self.mfma_c[x] = p
        self.counts['mfma'] = self.counts.get('mfma', 0) + 1

    def ds_read(self, d, n, addr, off):
        D = R(d, n)
        self._wait_mem(D + [addr])
        self._mfma_d_hazard(D + [addr])
        op = {1: "ds_read_b32", 2: "ds_read_b64", 4: "ds_read_b128"}[n]
        self.raw(f"{op} {vr(d,n)}, {vr(addr)} offset:{off}")
        self.lgkm.append(set(D))
        for x in D:
            self.valu_w.pop(x, None); self.mfma_w.pop(x, None); self.trans_w.pop(x, None); self.dot_w.pop(x, None)
        self.counts['ds'] = self.counts.get('ds', 0) + 1
    def ds_write(self, s, n, addr, off):
        S = R(s, n)
        self._wait_mem(S + [addr])
        self._mfma_d_hazard(S + [addr])
        for x in S + [addr]:
            if x in self.dot_w: self._need(self.dot_w[x], 3)
        op = {1: "ds_write_b32", 2: "ds_write_b64", 4: "ds_write_b128"}[n]
        self.raw(f"{op} {vr(addr)}, {vr(s,n)} offset:{off}")
        self.lgkm.append(set())
        self.counts['ds'] = self.counts.get('ds', 0) + 1
    def buf_load(self, d, n, voff, srd, soff, off):
        D = R(d, n)
        self._wait_mem(D + [voff])
        self._mfma_d_hazard(D + [voff])
        for s in R(srd, 4) + ([soff] if isinstance(soff, int) else []):
            if s in self.sgpr_w: self._need(self.sgpr_w[s], 5)
        op = {1: "buffer_load_dword", 2: "buffer_load_dwordx2", 4: "buffer_load_dwordx4"}[n]
        so = sr(soff) if isinstance(soff, int) else "0"
        self.raw(f"{op} {vr(d,n)}, {vr(voff)}, {sr(srd,4)}, {so} offen offset:{off}")
        self.vm.append(set(D))
        for x in D:
            self.valu_w.pop(x, None); self.mfma_w.pop(x, None); self.trans_w.pop(x, None); self.dot_w.pop(x, None)
        self.counts['vmem'] = self.counts.get('vmem', 0) + 1
    def buf_store(self, s, n, voff, srd, soff, off):
        S = R(s, n)
        self._wait_mem(S + [voff])
        self._mfma_d_hazard(S + [voff])
        for x in R(srd, 4) + ([soff] if isinstance(soff, int) else []):
            if x in self.sgpr_w: self._need(self.sgpr_w[x], 5)
        op = {1: "buffer_store_dword", 2: "buffer_store_dwordx2", 4: "buffer_store_dwordx4"}[n]
        so = sr(soff) if isinstance(soff, int) else "0"
        import sys
        self.raw(f"{op} {vr(s,n)}, {vr(voff)}, {sr(srd,4)}, {so} offen offset:{off}" + (" nt" if "stnt" in sys.argv else ""))
        self.vm.append(set())
        p = self.pos - 1
        if n >= 3:
            for x in S: self.store_r[x] = p
        self.counts['vmem'] = self.counts.get('vmem', 0) + 1
    def buf_load_lds(self, voff, srd, soff, tag):
        self._wait_mem([voff])
        self._mfma_d_hazard([voff])
        if voff in self.valu_w: pass
        so = sr(soff) if isinstance(soff, int) else "0"
        import sys
        self.raw(f"buffer_load_dwordx4 {vr(voff)}, {sr(srd,4)}, {so} offen" + (" nt" if "ldnt" in sys.argv else "") + " lds")
        self.vm.append({tag})
        self.counts['vmem'] = self.counts.get('vmem', 0) + 1
    def wait_tag(self, tag):
        self._wait_mem([tag])
    def salu(self, text):
        self.raw(text)
        self.counts['salu'] = self.counts.get('salu', 0) + 1

    def v2(self, op, d, a, b, kind="valu"):
        rs = [x for x in (a, b) if isinstance(x, int)]
        fa = vr(a) if isinstance(a, int) else a
        fb = vr(b) if isinstance(b, int) else b
        self.valu(f"{op} {vr(d)}, {fa}, {fb}", w=[d], r=rs, kind=kind)
    def v1(self, op, d, a, kind="valu"):
        rs = [a] if isinstance(a, int) else []
        fa = vr(a) if isinstance(a, int) else a
        self.valu(f"{op} {vr(d)}, {fa}", w=[d], r=rs, kind=kind)
    def v3(self, op, d, a, b, c, kind="valu"):
        rs = [x for x in (a, b, c) if isinstance(x, int)]
        f = [vr(x) if isinstance(x, int) else x for x in (a, b, c)]
        self.valu(f"{op} {vr(d)}, {f[0]}, {f[1]}, {f[2]}", w=[d], r=rs, kind=kind)
    def cndmask(self, d, f, t, m):
        rs = [x for x in (f, t) if isinstance(x, int)]
        ff = vr(f) if isinstance(f, int) else f
        ft = vr(t) if isinstance(t, int) else t
        self.valu(f"v_cndmask_b32 {vr(d)}, {ff}, {ft}, {sr(m,2)}", w=[d], r=rs, sr_=[m, m+1])
    def pack(self, d, lo, hi):
        self.valu(f"v_cvt_pk_bf16_f32 {vr(d)}, {vr(lo)}, {vr(hi)}", w=[d], r=[lo, hi])
    def swap32(self, a, b):
        self.valu(f"v_permlane32_swap_b32 {vr(a)}, {vr(b)}", w=[a, b], r=[a, b], kind="permlane")
    def text(self):
        return "\n".join(self.out) + "\n"
```

```python
from asmlib import *

class Op:
    __slots__ = ("kind", "fn", "args", "kw", "R", "W", "idx", "preds", "succs", "prio", "t_issue", "npred")
    def __init__(self, kind, fn, args, kw, R, W):
        self.kind = kind; self.fn = fn; self.args = args; self.kw = kw
        self.R = set(R); self.W = set(W)
        self.preds = []; self.succs = []

import os
_P = dict(kv.split("=") for kv in os.environ.get("SCHED", "").split(",") if kv)
_V = float(_P.get("v", 4)); _M = float(_P.get("m", 8)); _DS = int(_P.get("ds", 140)); _ML = int(_P.get("ml", 64)); _MP = int(_P.get("mp", 32))
ISSUE = {"valu": _V, "trans": 2*_V, "dotc": _V, "dot": _V, "permlane": _V, "readlane": _V, "mfma": _M, "ds_read": 4, "ds_write": 8,
         "vload": 4, "vstore": 8, "salu": 4}
def lat(p, c, dep):
    if dep == "RAW":
        if p.kind == "mfma":
            if c.kind == "mfma" and c.args[3] == p.args[0] and not (set(R(c.args[1],4)+R(c.args[2],4)) & p.W):
                return 32
            return _ML
        if p.kind == "ds_read": return _DS
        if p.kind == "vload": return 3000
        if p.kind == "trans": return 12
        if p.kind == "dotc": return 8 if c.kind == "dotc" else 16
        if p.kind == "dot": return 16
        if p.kind in ("valu", "permlane"):
            if c.kind in ("mfma", "permlane"): return 12
            return 5
        return 4
    if dep == "WAR":
        if p.kind == "mfma" and p.args[3] is not None and c.kind != "mfma" and (set(R(p.args[3],16)) & c.W): return 32
        if p.kind == "vstore": return 12
        return ISSUE[p.kind]
    if dep == "WAW":
        if p.kind == "mfma" and c.kind != "mfma": return 64
        if p.kind == "ds_read": return 140
        if p.kind == "vload": return 3000
        return ISSUE[p.kind]

class Rec:
    def __init__(self):
        self.ops = []
    def _add(self, kind, fn, args, kw, R_, W_):
        self.ops.append(Op(kind, fn, args, kw, R_, W_))
    def valu(self, text, w=(), r=(), sw=(), sr_=(), kind="valu"):
        self._add(kind, "valu", (text,), dict(w=list(w), r=list(r), sw=list(sw), sr_=list(sr_), kind=kind),
                  list(r) + [("s", s) for s in sr_], list(w) + [("s", s) for s in sw])
    def mfma(self, d, a, b, c=None):
        self._add("mfma", "mfma", (d, a, b, c), {}, R(a,4)+R(b,4)+(R(c,16) if c is not None else []), R(d,16))
    def ds_read(self, d, n, addr, off, xr=()):
        self._add("ds_read", "ds_read", (d, n, addr, off), {}, [addr] + list(xr), R(d,n))
    def ds_write(self, s, n, addr, off, xw=()):
        self._add("ds_write", "ds_write", (s, n, addr, off), {}, R(s,n)+[addr], list(xw))
    def buf_load(self, d, n, voff, srd, soff, off):
        self._add("vload", "buf_load", (d, n, voff, srd, soff, off), {}, [voff] + ([("s", soff)] if isinstance(soff, int) else []), R(d,n))
    def buf_store(self, s, n, voff, srd, soff, off):
        self._add("vstore", "buf_store", (s, n, voff, srd, soff, off), {}, R(s,n)+[voff] + ([("s", soff)] if isinstance(soff, int) else []), [])
    def salu(self, text, sw=(), sr_=()):
        self._add("salu", "salu", (text,), {}, [("s", s) for s in sr_] , [("s", s) for s in sw] + ["scc"])
    v2 = K.v2; v1 = K.v1; v3 = K.v3; cndmask = K.cndmask; pack = K.pack; swap32 = K.swap32
    def comment(self, t): pass

    def schedule(self, verbose=False):
        ops = self.ops
        lastw = {}; readers = {}
        for i, o in enumerate(ops):
            o.idx = i
            deps = {}
            for r in o.R:
                if r in lastw: deps[lastw[r]] = max(deps.get(lastw[r], 0), lat(ops[lastw[r]], o, "RAW"))
            for w in o.W:
                if w in lastw: deps[lastw[w]] = max(deps.get(lastw[w], 0), lat(ops[lastw[w]], o, "WAW"))
                for q in readers.get(w, ()):
                    if q != i: deps[q] = max(deps.get(q, 0), lat(ops[q], o, "WAR"))
            for r in o.R: readers.setdefault(r, []).append(i)
            for w in o.W:
                lastw[w] = i; readers[w] = []
            o.preds = list(deps.items())
            for p, l in o.preds: ops[p].succs.append((i, l))
        for o in reversed(ops):
            o.prio = ISSUE[o.kind] + max([ops[s].prio + l for s, l in o.succs], default=0)
            if o.kind == "vstore": o.prio += int(_P.get("st", 0))
            if o.kind == "ds_write": o.prio += int(_P.get("dw", 0))
        for o in ops: o.npred = len(o.preds); o.t_issue = None
        est = {o.idx: 0 for o in ops}
        ready = [o.idx for o in ops if o.npred == 0]
        t = 0; mfma_free = 0; order = []
        while ready:
            avail = [i for i in ready if est[i] <= t]
            pick = None
            if avail:
                m = [i for i in avail if ops[i].kind == "mfma"]
                nm = [i for i in avail if ops[i].kind != "mfma"]
                if m and t >= mfma_free:
                    pick = max(m, key=lambda i: (ops[i].prio, -i))
                elif nm:
                    pick = max(nm, key=lambda i: (ops[i].prio, -i))
                elif m:
                    t = mfma_free
                    continue
            if pick is None:
                tn = min(est[i] for i in ready)
                t = max(t + 1, tn)
                continue
            o = ops[pick]
            o.t_issue = t
            order.append(pick)
            ready.remove(pick)
            if o.kind == "mfma": mfma_free = t + _MP
            t += ISSUE[o.kind]
            for s, l in o.succs:
                est[s] = max(est[s], o.t_issue + l)
                ops[s].npred -= 1
                if ops[s].npred == 0: ready.append(s)
        assert len(order) == len(ops)
        self.est_cycles = t
        return [ops[i] for i in order]

    def emit(self, k, do_sched=True, stamps=None):
        seq = self.schedule() if do_sched else self.ops
        n = len(seq)
        marks = {}
        if stamps:
            for i, sg in enumerate(stamps):
                marks[(i+1)*n//(len(stamps)+1)] = sg
        import sys
        PRIO = [int(a[4:]) for a in sys.argv if a.startswith("prio")]
        PRIO = PRIO[0] if PRIO else 0
        hi = [False]*n
        if PRIO:
            last = -1000
            mf = [i for i, o in enumerate(seq) if o.kind == "mfma"]
            for a, b in zip(mf, mf[1:]):
                if b - a <= PRIO:
                    for i in range(a, b+1): hi[i] = True
        state = False
        for idx, o in enumerate(seq):
            if PRIO and hi[idx] != state:
                state = hi[idx]
                k.raw("s_setprio 2" if state else "s_setprio 0")
            if idx == n-1 and state:
                pass
            if idx in marks:
                k.raw(f"s_memtime s[{marks[idx]}:{marks[idx]+1}]")
                import sys
                print(f"stamp at op {idx}/{n} est t={o.t_issue}", file=sys.stderr)
            getattr(k, o.fn)(*o.args, **o.kw)
        if PRIO and state: k.raw("s_setprio 0")
        return getattr(self, "est_cycles", 0)
```

```python
import sys, math, struct
sys.path.insert(0, "gen")
from asmlib import *
from sched import Rec

NAME = "standalone__video_video_swin__vision"
T_STRIDE = 9633792
ROW = 43008
X_BYTES = 38535168
WS_STAGE = 36864
LDS_W = 0
LDS_X = 32768
LDS_TOTAL = 81920
NS = [int(a[2:]) for a in sys.argv[2:] if a.startswith("ns")]
NS = NS[0] if NS else 16
WS_X1 = 0x20000
GRID = [int(a[4:]) for a in sys.argv[2:] if a.startswith('grid')]
GRID = GRID[0] if GRID else None
PROF = len(sys.argv) > 2 and "prof" in sys.argv[2:]
PR = [a for a in sys.argv[2:] if a.startswith("R")]
PR = PR[0] if PR else None
NOSCHED = len(sys.argv) > 2 and "nosched" in sys.argv[2:]
ABL = set(a[4:] for a in sys.argv[2:] if a.startswith("abl_"))

HEADER = """; Kernarg layout for this problem (64 bytes, ptrs only, base s[0:1]):
;   offset   0: d_in[0] x  shape=(1, 4, 224, 224, 96) dtype=bfloat16 strides=(38535168, 9633792, 43008, 192, 2) contiguous=True
;   offset   8: d_in[1] wqkv_t  shape=(96, 288) dtype=bfloat16 strides=(576, 2) contiguous=True
;   offset  16: d_in[2] wo_t  shape=(96, 96) dtype=bfloat16 strides=(192, 2) contiguous=True
;   offset  24: d_in[3] wqkv_s  shape=(96, 288) dtype=bfloat16 strides=(576, 2) contiguous=True
;   offset  32: d_in[4] wo_s  shape=(96, 96) dtype=bfloat16 strides=(192, 2) contiguous=True
;   offset  40: d_out     shape=(1, 4, 224, 224, 96) dtype=bfloat16 (2 bytes/elem)
;   offset  48: d_debug   256 bytes
;   offset  56: d_ws      268435456 bytes workspace
; Two launches: (1) fold weights  M = scale*log2e*Wq*Wk^T and Wvo = Wv*Wo into MFMA fragment order in d_ws,
;               (2) fused temporal + spatial window attention, one workgroup per 8x8 window (all 4 frames);
;                   the last NS windows are split into a temporal-only and a spatial-only workgroup (hand-off
;                   through d_ws, flag bytes in d_debug) so that the load balances better over the CUs.
; (generated by gen/gen4.py)
; @launch kernel=fold_kernel grid=(36,1,1) block=(64,1,1) lds=0
; @launch kernel=%s_kernel grid=(%d,1,1) block=(256,1,1) lds=%d
.amdgcn_target "amdgcn-amd-amdhsa--gfx950"
.text
""" % (NAME, GRID or (784 + NS), LDS_TOTAL)

def kd(name, nv, ns):
    return f""".amdhsa_kernel {name}
  .amdhsa_next_free_vgpr {nv}
  .amdhsa_next_free_sgpr {ns}
  .amdhsa_accum_offset {(nv+3)//4*4}
  .amdhsa_group_segment_fixed_size 0
  .amdhsa_kernarg_size 64
  .amdhsa_user_sgpr_count 2
  .amdhsa_user_sgpr_kernarg_segment_ptr 1
  .amdhsa_system_sgpr_workgroup_id_x 1
.end_amdhsa_kernel
"""

def gen_fold():
    k = K()
    k.out.append(".globl fold_kernel\n.p2align 8\n.type fold_kernel,@function\nfold_kernel:")
    k.salu("s_cmp_ge_u32 s2, 36")
    k.salu("s_cbranch_scc1 L_fold_done")
    k.salu("s_load_dwordx4 s[4:7], s[0:1], 8")
    k.salu("s_load_dwordx4 s[8:11], s[0:1], 24")
    k.salu("s_load_dwordx2 s[12:13], s[0:1], 56")
    k.salu("s_mul_i32 s14, s2, 29")
    k.salu("s_lshr_b32 s14, s14, 8")
    k.salu("s_mul_i32 s15, s14, 9")
    k.salu("s_sub_u32 s15, s2, s15")
    k.salu("s_mul_i32 s16, s15, 86")
    k.salu("s_lshr_b32 s16, s16, 8")
    k.salu("s_mul_i32 s17, s16, 3")
    k.salu("s_sub_u32 s17, s15, s17")
    k.salu("s_and_b32 s18, s14, 1")
    k.salu("s_lshr_b32 s19, s14, 1")
    k.v2("v_and_b32", 1, "31", 0)
    k.v2("v_lshrrev_b32", 2, "5", 0)
    k.v2("v_and_b32", 3, "19", 1)
    k.v2("v_and_b32", 4, "4", 1)
    k.v2("v_lshlrev_b32", 4, "1", 4)
    k.v2("v_or_b32", 3, 3, 4)
    k.v2("v_and_b32", 4, "8", 1)
    k.v2("v_lshrrev_b32", 4, "1", 4)
    k.v2("v_or_b32", 3, 3, 4)
    k.raw("s_waitcnt lgkmcnt(0)")
    k.salu("s_cmp_eq_u32 s19, 0")
    k.salu("s_cselect_b32 s20, s4, s8")
    k.salu("s_cselect_b32 s21, s5, s9")
    k.salu("s_cselect_b32 s22, s6, s10")
    k.salu("s_cselect_b32 s23, s7, s11")
    k.salu("s_lshl_b32 s24, s16, 5")
    k.v2("v_add_u32", 5, "s24", 3)
    k.salu("s_movk_i32 s25, 576")
    k.valu("v_mul_lo_u32 v5, v5, s25", w=[5], r=[5])
    k.v2("v_lshlrev_b32", 6, "4", 2)
    k.v2("v_add_u32", 5, 5, 6)
    k.salu("s_mul_i32 s26, s18, 384")
    k.v2("v_add_u32", 5, "s26", 5)
    for s in range(6):
        k.raw(f"global_load_dwordx4 v[{16+4*s}:{19+4*s}], v5, s[20:21] offset:{32*s}")
    k.salu("s_lshl_b32 s24, s17, 5")
    k.v2("v_add_u32", 7, "s24", 3)
    k.salu("s_cmp_eq_u32 s18, 0")
    k.salu("s_cbranch_scc0 L_fold_wo")
    k.valu("v_mul_lo_u32 v8, v7, s25", w=[8], r=[7])
    k.v2("v_add_u32", 8, 8, 6)
    for s in range(6):
        k.raw(f"global_load_dwordx4 v[{40+4*s}:{43+4*s}], v8, s[20:21] offset:{192+32*s}")
    k.salu("s_branch L_fold_mm")
    k.label("L_fold_wo")
    k.v2("v_lshlrev_b32", 8, "1", 7)
    k.salu("s_movk_i32 s27, 1536")
    k.valu("v_mul_lo_u32 v9, v2, s27", w=[9], r=[2])
    k.v2("v_add_u32", 8, 8, 9)
    for s in range(6):
        if s > 0:
            k.v2("v_add_u32", 8, "0xc00", 8)
        for j in range(8):
            k.raw(f"global_load_ushort v{96+8*s+j}, v8, s[22:23] offset:{192*j}")
    k.raw("s_waitcnt vmcnt(0)")
    for i in range(24):
        k.raw(f"v_lshl_or_b32 v{40+i}, v{96+2*i+1}, 16, v{96+2*i}")
    k.nop(2)
    k.label("L_fold_mm")
    k.raw("s_waitcnt vmcnt(0)")
    for s in range(6):
        k.raw(f"v_mfma_f32_32x32x16_bf16 v[64:79], v[{16+4*s}:{19+4*s}], v[{40+4*s}:{43+4*s}], " + ("0" if s == 0 else "v[64:79]"))
    c0 = (96 ** -0.5) * math.log2(math.e)
    c0bits = struct.unpack("<I", struct.pack("<f", c0))[0]
    k.salu(f"s_mov_b32 s28, {c0bits:#x}")
    k.salu("s_cmp_eq_u32 s18, 0")
    k.salu("s_cselect_b32 s28, s28, 1.0")
    k.salu("s_mul_i32 s30, s16, 6")
    k.salu("s_add_u32 s30, s30, s17")
    k.salu("s_mul_i32 s31, s17, 6")
    k.salu("s_lshl_b32 s32, s16, 1")
    k.salu("s_add_u32 s31, s31, s32")
    k.salu("s_add_u32 s31, s31, 18")
    k.salu("s_cmp_eq_u32 s18, 0")
    k.salu("s_cselect_b32 s30, s30, s31")
    k.salu("s_movk_i32 s31, 3072")
    k.salu("s_movk_i32 s32, 1024")
    k.salu("s_cselect_b32 s31, s31, s32")
    k.salu("s_lshl_b32 s30, s30, 10")
    k.salu("s_mul_i32 s29, s19, 36864")
    k.salu("s_add_u32 s29, s29, s30")
    k.v2("v_lshlrev_b32", 10, "4", 0)
    k.v2("v_add_u32", 10, "s29", 10)
    k.v2("v_add_u32", 11, "s31", 10)
    k.nop(16)
    for i in range(16):
        k.v2("v_mul_f32", 64+i, "s28", 64+i)
    for i in range(8):
        k.pack(80+i, 64+2*i, 65+2*i)
    k.raw("global_store_dwordx4 v10, v[80:83], s[12:13]")
    k.raw("global_store_dwordx4 v11, v[84:87], s[12:13]")
    k.label("L_fold_done")
    k.raw("s_endpgm")
    return k.text()

XP, HH = 16, 64
A = [112 + 16*i for i in range(8)]
WF = 240
V_IVAL, V_LANE, V_XOFF, V_XW, V_XR, V_OOFF, V_WRD, V_WG = 0, 1, 2, 3, 4, 5, 6, 7
T0 = 8
SRD_X, SRD_O, SRD_W = 12, 16, 20
S_WAVE, S_BASE = 24, 27
S_ONES = 30
S_HIM = 31
S_M1, S_M2, S_M3 = 32, 34, 36
S_MV = [38, 40, 42, 44]
S_SO0, S_SO1 = 46, 47
S_OO0, S_OO1 = 50, 51
S_TMP = 48
S_MODE, S_SLOT, S_X1 = 61, 62, 63
S_N1, S_N2, S_N3, S_B2 = 84, 86, 88, 90
S_IM = [64 + 2*i for i in range(8)]
S_WOFF = [52 + i for i in range(9)]

def ln_stats(k, xp, tmp):
    s0, s1, q0, q1, r, nb = R(tmp, 6)
    for a in (s0, s1, q0, q1): k.v1("v_mov_b32", a, "0")
    for i in range(24):
        s = (s0, s1)[i & 1]; q = (q0, q1)[i & 1]
        k.valu(f"v_dot2c_f32_bf16 {vr(s)}, s{S_ONES}, {vr(xp+i)}", w=[s], r=[xp+i, s], kind="dotc")
        k.valu(f"v_dot2c_f32_bf16 {vr(q)}, {vr(xp+i)}, {vr(xp+i)}", w=[q], r=[xp+i, q], kind="dotc")
    k.v2("v_add_f32", s0, s0, s1)
    k.v2("v_add_f32", q0, q0, q1)
    s, q = s0, q0
    k.swap32(s, q)
    k.v2("v_add_f32", s, s, q)
    k.v1("v_mov_b32", q, s)
    k.swap32(s, q)
    k.v2("v_mul_f32", s, "0x3c2aaaab", s)
    k.v2("v_mul_f32", q, "0x3c2aaaab", q)
    k.valu(f"v_fma_f32 {vr(q)}, -{vr(s)}, {vr(s)}, {vr(q)}", w=[q], r=[s, q])
    k.v2("v_max_f32", q, "0", q)
    k.v2("v_add_f32", q, "0x3727c5ac", q)
    k.v1("v_rsq_f32", r, q, kind="trans")
    k.valu(f"v_mul_f32 {vr(nb)}, -{vr(s)}, {vr(r)}", w=[nb], r=[s, r])
    return r, nb

def ln_stats_mfma(k, xp, tmp, gb, sb, ones):
    e = R(tmp, 4); q, t, r, nb = tmp+4, tmp+5, tmp+6, tmp+7
    for s in range(6):
        k.mfma(gb, xp+4*s, xp+4*s, None if s == 0 else gb)
        k.mfma(sb, ones, xp+4*s, None if s == 0 else sb)
    for a in range(4):
        k.cndmask(e[a], gb+a, gb+4+a, S_M1)
        k.cndmask(e[a], e[a], gb+8+a, S_M2)
        k.cndmask(e[a], e[a], gb+12+a, S_M3)
    k.cndmask(q, e[0], e[1], S_N1)
    k.cndmask(q, q, e[2], S_N2)
    k.cndmask(q, q, e[3], S_N3)
    k.v1("v_mov_b32", t, q)
    k.swap32(q, t)
    k.cndmask(q, q, t, S_B2)
    m = e[0]
    k.v2("v_mul_f32", m, "0x3c2aaaab", sb)
    k.v2("v_mul_f32", q, "0x3c2aaaab", q)
    k.valu(f"v_fma_f32 {vr(q)}, -{vr(m)}, {vr(m)}, {vr(q)}", w=[q], r=[m, q])
    k.v2("v_max_f32", q, "0", q)
    k.v2("v_add_f32", q, "0x3727c5ac", q)
    k.v1("v_rsq_f32", r, q, kind="trans")
    k.valu(f"v_mul_f32 {vr(nb)}, -{vr(m)}, {vr(r)}", w=[nb], r=[m, r])
    return r, nb

def ln_stats_valu(k, xp, tmp, tb):
    s0, s1, q0, q1, r, nb = R(tmp, 6)
    for i in range(24):
        lo = tb + 2*(i % 8); hi = lo + 1
        k.v2("v_lshlrev_b32", lo, "16", xp+i)
        k.v2("v_and_b32", hi, f"s{S_HIM}", xp+i)
        if i == 0:
            k.v1("v_mov_b32", s0, lo); k.v1("v_mov_b32", s1, hi)
            k.v2("v_mul_f32", q0, lo, lo); k.v2("v_mul_f32", q1, hi, hi)
        else:
            k.v2("v_add_f32", s0, s0, lo); k.v2("v_add_f32", s1, s1, hi)
            k.valu(f"v_fmac_f32 {vr(q0)}, {vr(lo)}, {vr(lo)}", w=[q0], r=[q0, lo])
            k.valu(f"v_fmac_f32 {vr(q1)}, {vr(hi)}, {vr(hi)}", w=[q1], r=[q1, hi])
    k.v2("v_add_f32", s0, s0, s1)
    k.v2("v_add_f32", q0, q0, q1)
    s, q = s0, q0
    k.swap32(s, q)
    k.v2("v_add_f32", s, s, q)
    k.v1("v_mov_b32", q, s)
    k.swap32(s, q)
    k.v2("v_mul_f32", s, "0x3c2aaaab", s)
    k.v2("v_mul_f32", q, "0x3c2aaaab", q)
    k.valu(f"v_fma_f32 {vr(q)}, -{vr(s)}, {vr(s)}, {vr(q)}", w=[q], r=[s, q])
    k.v2("v_max_f32", q, "0", q)
    k.v2("v_add_f32", q, "0x3727c5ac", q)
    k.v1("v_rsq_f32", r, q, kind="trans")
    k.valu(f"v_mul_f32 {vr(nb)}, -{vr(s)}, {vr(r)}", w=[nb], r=[s, r])
    return r, nb

def ln_stats2(k):
    if "st_mfma" in sys.argv:
        ones = A[5]
        for i in range(4): k.v1("v_mov_b32", ones+i, f"s{S_ONES}")
        return [ln_stats_mfma(k, XP+24*j, A[6]+8*j, A[2*j], A[2*j+1], ones) for j in range(2)]
    if "st_valu" in sys.argv:
        return [ln_stats_valu(k, XP+24*j, A[6]+8*j, A[j]) for j in range(2)]
    return [ln_stats(k, XP+24*j, A[6]+8*j) for j in range(2)]

def ln_norm_kstep(k, xp, h, r, nb, tmp, s):
    for i in range(4*s, 4*s+4):
        if 'nonorm' in ABL: continue
        lo = tmp + 2*(i % 4); hi = lo + 1
        k.v2("v_lshlrev_b32", lo, "16", xp+i)
        k.v2("v_and_b32", hi, f"s{S_HIM}", xp+i)
        k.v3("v_fma_f32", lo, lo, r, nb)
        k.v3("v_fma_f32", hi, hi, r, nb)
        k.pack(h+i, lo, hi)

class WFrag:
    def __init__(self, k): self.k = k
    def get(self, p):
        reg = WF + 4*(p % 4)
        if p >= 4 and 'nofrag' not in ABL:
            self.k.ds_read(reg, 4, V_WRD, LDS_W + (p-4)*1024)
        return reg

def pack_pair(k, a0, a1):
    for i in range(8): k.pack(a0+i, a0+2*i, a0+2*i+1)
    for i in range(8): k.pack(a0+8+i, a1+2*i, a1+2*i+1)

def ident(k, dst):
    if "vres" in sys.argv: return
    for i in range(8):
        k.cndmask(dst+i, "0", V_IVAL, S_IM[i])

def stage_front(k, wf, lnp):
    for s in range(6):
        for j in range(2):
            ln_norm_kstep(k, XP+24*j, HH+24*j, lnp[j][0], lnp[j][1], A[7]+8*j, s)
        for ct in range(3):
            w = wf.get(s*3+ct)
            for j in range(2):
                a = A[2*ct+j]
                k.mfma(a, w, HH+24*j+4*s, None if s == 0 else a)
    for ct in range(3):
        pack_pair(k, A[2*ct], A[2*ct+1])

def Gop(j, s):
    return A[2*(s//2)] + 8*j + 4*(s % 2)

def vgemm_ct(k, wf, ct, b0, b1):
    for s in range(6):
        w = wf.get(18+ct*6+s)
        for j, a in enumerate((b0, b1)):
            k.mfma(a, HH+24*j+4*s, w, None if s == 0 else a)
    pack_pair(k, b0, b1)

def stamp(k, idx, force=False):
    if not PROF: return
    if PR and not force: return
    k.raw(f"s_memtime s[{64+24+2*idx}:{65+24+2*idx}]")
    k.raw("s_waitcnt lgkmcnt(0)"); k.lgkm = []

def gen_main():
    if 'nomfma' in ABL:
        Rec.mfma = lambda self, d, a, b, c=None: None
    if 'novalu' in ABL:
        Rec.valu = lambda self, *a, **kw: None
    k = K()
    kn = NAME + "_kernel"
    k.out.append(f".globl {kn}\n.p2align 8\n.type {kn},@function\n{kn}:")
    k.salu(f"s_cmp_ge_u32 s2, {784+NS}")
    k.salu("s_cbranch_scc1 L_main_done")
    k.salu("s_load_dwordx2 s[4:5], s[0:1], 0")
    k.salu("s_load_dwordx4 s[8:11], s[0:1], 48")
    k.salu("s_load_dwordx2 s[6:7], s[0:1], 40")
    k.salu(f"s_mov_b32 s{S_MODE}, 1")
    k.salu(f"s_sub_u32 s3, s2, {NS}")
    k.salu(f"s_mov_b32 s{S_SLOT}, s2")
    k.salu(f"s_cmp_lt_u32 s2, {NS}")
    k.salu(f"s_cselect_b32 s{S_MODE}, 0, s{S_MODE}")
    k.salu(f"s_sub_u32 s28, s2, 784")
    k.salu(f"s_cmp_ge_u32 s2, 784")
    k.salu(f"s_cselect_b32 s{S_MODE}, 2, s{S_MODE}")
    k.salu(f"s_cselect_b32 s{S_SLOT}, s28, s{S_SLOT}")
    k.salu(f"s_add_u32 s28, s{S_SLOT}, {784-NS}")
    k.salu(f"s_cmp_eq_u32 s{S_MODE}, 1")
    k.salu(f"s_cselect_b32 s3, s3, s28")
    k.v2("v_lshrrev_b32", T0, "6", 0)
    k.v2("v_and_b32", V_LANE, "63", 0)
    k.valu(f"v_readfirstlane_b32 s{S_WAVE}, {vr(T0)}", r=[T0], sw=[S_WAVE], kind="readlane")
    k.salu("s_mul_i32 s25, s3, 2341")
    k.salu("s_lshr_b32 s25, s25, 16")
    k.salu("s_mul_i32 s26, s25, 28")
    k.salu("s_sub_u32 s26, s3, s26")
    k.salu(f"s_mul_i32 s{S_BASE}, s25, {8*ROW}")
    k.salu("s_mul_i32 s28, s26, 1536")
    k.salu(f"s_add_u32 s{S_BASE}, s{S_BASE}, s28")
    k.salu(f"s_mov_b32 s{S_ONES}, 0x3f803f80")
    k.salu(f"s_mov_b32 s{S_HIM}, 0xffff0000")
    hf, tok, t_, pos, q3 = T0+1, T0+2, T0+3, T0+4, T0+7
    k.v2("v_lshrrev_b32", hf, "5", V_LANE)
    k.v2("v_and_b32", tok, "31", V_LANE)
    k.v2("v_and_b32", t_, "3", V_LANE)
    k.v2("v_lshrrev_b32", pos, "2", tok)
    k.salu(f"s_mov_b32 s{S_TMP}, {T_STRIDE}")
    k.valu(f"v_mul_lo_u32 {vr(V_XOFF)}, {vr(t_)}, s{S_TMP}", w=[V_XOFF], r=[t_])
    k.v2("v_mul_u32_u24", T0+5, "0xc0", pos)
    k.v2("v_add_u32", V_XOFF, V_XOFF, T0+5)
    k.v2("v_lshlrev_b32", T0+5, "4", hf)
    k.v2("v_add_u32", V_XOFF, V_XOFF, T0+5)
    k.v2("v_lshlrev_b32", V_WG, "4", 0)
    k.v2("v_lshlrev_b32", V_WRD, "4", V_LANE)
    k.salu(f"s_mul_i32 s{S_SO0}, s{S_WAVE}, {2*ROW}")
    k.salu(f"s_add_u32 s{S_SO0}, s{S_SO0}, s{S_BASE}")
    k.salu(f"s_add_u32 s{S_SO1}, s{S_SO0}, {ROW}")
    k.raw("s_waitcnt lgkmcnt(0)")
    for base, ptr, n in ((SRD_X, 4, X_BYTES), (SRD_O, 6, X_BYTES), (SRD_W, 10, WS_X1 + NS*49152)):
        k.salu(f"s_mov_b32 s{base}, s{ptr}")
        k.salu(f"s_and_b32 s{base+1}, s{ptr+1}, 0xffff")
        k.salu(f"s_mov_b32 s{base+2}, {n}")
        k.salu(f"s_mov_b32 s{base+3}, 0x20000")
    if PROF:
        k.raw("s_memrealtime s[84:85]")
        k.raw("s_getreg_b32 s86, hwreg(HW_REG_HW_ID)")
        k.raw("s_getreg_b32 s87, hwreg(HW_REG_XCC_ID)")
    stamp(k, 0)
    k.salu(f"s_mul_i32 s{S_X1}, s{S_SLOT}, 49152")
    k.salu(f"s_mul_i32 s{S_TMP}, s{S_WAVE}, 12288")
    k.salu(f"s_add_u32 s{S_X1}, s{S_X1}, s{S_TMP}")
    k.salu(f"s_add_u32 s{S_X1}, s{S_X1}, {WS_X1}")
    k.salu(f"s_cmp_eq_u32 s{S_MODE}, 2")
    k.salu("s_cbranch_scc1 L_skipld")
    for c in range(8):
        k.salu(f"s_mov_b32 s{S_TMP}, {4096 + c*4096}")
        if 'now' not in ABL: k.buf_load(A[0]+4*c, 4, V_WG, SRD_W, S_TMP, 0)
    if "dma" in sys.argv:
        p1, p2, tt_ = A[4], A[4]+1, A[4]+2
        k.salu(f"s_mov_b32 s84, -1"); k.salu(f"s_mov_b32 s85, 0")
        k.v2("v_add_u32", p1, "0x400", V_WRD)
        k.v2("v_add_u32", tt_, str(ROW-512), V_WRD)
        k.cndmask(p1, tt_, p1, 84)
        k.v2("v_add_u32", p2, str(ROW+512), V_WRD)
        k.salu(f"s_mul_i32 s86, s{S_WAVE}, 12288")
        k.salu(f"s_add_u32 s86, s86, {LDS_X}")
        k.salu(f"s_mov_b32 s{S_TMP}, s{S_SO0}")
        for tt in range(4):
            for p, pr in enumerate((V_WRD, p1, p2)):
                k.salu(f"s_add_u32 m0, s86, {tt*3072 + p*1024}")
                if tt == 0:
                    v = pr; k.nop(1)
                else:
                    v = A[4]+2+(p & 1)
                    k.v2("v_xor_b32", v, str(tt << 4), pr)
                k.buf_load_lds(v, SRD_X, S_TMP, "xdma")
            if tt < 3:
                k.salu(f"s_add_u32 s{S_TMP}, s{S_TMP}, {T_STRIDE}")
        k.v2("v_xor_b32", A[4], hf, t_)
        k.v2("v_lshlrev_b32", A[4], "4", A[4])
        k.v2("v_mul_u32_u24", A[4]+1, "0xc0", pos)
        k.v2("v_add_u32", A[4], A[4], A[4]+1)
        k.v2("v_mul_u32_u24", A[4]+1, "0xc00", t_)
        k.v2("v_add_u32", A[4], A[4], A[4]+1)
        k.v2("v_add_u32", V_XOFF, "s86", A[4])
    else:
      for j in range(2):
        for s in range(6):
            if 'noload' not in ABL: k.buf_load(XP+24*j+4*s, 4, V_XOFF, SRD_X, S_SO0+j, 32*s)
    for f in range(4):
        k.buf_load(WF+4*f, 4, V_WRD, SRD_W, None, f*1024)
    k.label("L_skipld")
    for c in range(8):
        k.salu(f"s_mov_b32 s{S_WOFF[c]}, {WS_STAGE + 4096 + c*4096}")
    k.salu(f"s_mov_b32 s{S_WOFF[8]}, {WS_STAGE}")
    k.salu(f"s_mul_i32 s{S_OO0}, s{S_WAVE}, {T_STRIDE}")
    k.salu(f"s_add_u32 s{S_OO0}, s{S_OO0}, s{S_BASE}")
    k.salu(f"s_add_u32 s{S_OO1}, s{S_OO0}, {4*ROW}")
    k.v2("v_lshrrev_b32", q3, "3", tok)
    for a, m in ((1, S_M1), (2, S_M2), (3, S_M3)):
        k.valu(f"v_cmp_eq_u32 {sr(m,2)}, {a}, {vr(q3)}", r=[q3], sw=[m, m+1])
    if "st_mfma" in sys.argv:
        for a, m in ((1, S_N1), (2, S_N2), (3, S_N3)):
            k.valu(f"v_cmp_eq_u32 {sr(m,2)}, {a}, {vr(t_)}", r=[t_], sw=[m, m+1])
    k.v2("v_and_b32", T0+6, "1", pos)
    if "st_mfma" in sys.argv:
        k.valu(f"v_cmp_eq_u32 {sr(S_B2,2)}, 1, {vr(T0+6)}", r=[T0+6], sw=[S_B2, S_B2+1])
    k.v2("v_xor_b32", T0+6, T0+6, hf)
    k.v2("v_lshlrev_b32", T0+5, "2", T0+6)
    k.v2("v_add_u32", T0+5, T0+5, q3)
    for a in range(4):
        k.valu(f"v_cmp_eq_u32 {sr(S_MV[a],2)}, {a}, {vr(T0+5)}", r=[T0+5], sw=[S_MV[a], S_MV[a]+1])
    k.v2("v_lshlrev_b32", T0+6, "3", T0+6)
    k.v2("v_lshlrev_b32", T0+5, "1", q3)
    k.v2("v_add_u32", T0+6, T0+6, T0+5)
    k.valu(f"v_bfe_u32 {vr(T0+5)}, {vr(tok)}, 1, 1", w=[T0+5], r=[tok])
    k.v2("v_add_u32", T0+6, T0+6, T0+5)
    for i in range(8):
        k.valu(f"v_cmp_eq_u32 {sr(S_IM[i],2)}, {i}, {vr(T0+6)}", r=[T0+6], sw=[S_IM[i], S_IM[i]+1])
    k.v2("v_lshlrev_b32", T0+5, "1", t_)
    k.v2("v_xor_b32", T0+5, T0+5, pos)
    k.v2("v_lshlrev_b32", T0+6, "5", hf)
    k.v2("v_add_u32", T0+5, T0+5, T0+6)
    k.v2("v_lshlrev_b32", T0+5, "4", T0+5)
    k.v2("v_mul_u32_u24", T0+6, "0x3000", t_)
    k.v2("v_add_u32", V_XW, T0+5, T0+6)
    k.salu(f"s_lshr_b32 s{S_TMP}, s{S_WAVE}, 1")
    k.salu(f"s_mul_i32 s{S_TMP}, s{S_TMP}, 6144")
    k.salu(f"s_and_b32 s{S_TMP+1}, s{S_WAVE}, 1")
    k.salu(f"s_lshl_b32 s{S_TMP+1}, s{S_TMP+1}, 8")
    k.salu(f"s_add_u32 s{S_TMP}, s{S_TMP}, s{S_TMP+1}")
    k.salu(f"s_add_u32 s{S_TMP}, s{S_TMP}, {LDS_X}")
    k.v2("v_add_u32", V_XW, f"s{S_TMP}", V_XW)
    k.salu(f"s_lshl_b32 s{S_TMP}, s{S_WAVE}, 1")
    k.v2("v_xor_b32", V_XR, f"s{S_TMP}", V_LANE)
    k.v2("v_lshlrev_b32", V_XR, "4", V_XR)
    k.salu(f"s_mul_i32 s{S_TMP}, s{S_WAVE}, 12288")
    k.salu(f"s_add_u32 s{S_TMP}, s{S_TMP}, {LDS_X}")
    k.v2("v_add_u32", V_XR, f"s{S_TMP}", V_XR)
    k.salu(f"s_mov_b32 s{S_TMP}, {ROW}")
    k.valu(f"v_mul_lo_u32 {vr(V_OOFF)}, {vr(q3)}, s{S_TMP}", w=[V_OOFF], r=[q3])
    k.v2("v_and_b32", T0+5, "7", tok)
    k.v2("v_mul_u32_u24", T0+5, "0xc0", T0+5)
    k.v2("v_add_u32", V_OOFF, V_OOFF, T0+5)
    k.v2("v_lshlrev_b32", T0+5, "4", hf)
    k.v2("v_add_u32", V_OOFF, V_OOFF, T0+5)
    k.v2("v_and_b32", T0+5, "1", tok)
    k.v2("v_lshlrev_b32", T0+5, "4", T0+5)
    k.v1("v_mov_b32", T0+6, "0x3f80")
    k.v2("v_lshlrev_b32", V_IVAL, T0+5, T0+6)
    k.salu(f"s_cmp_eq_u32 s{S_MODE}, 2")
    k.salu("s_cbranch_scc1 L_Shead")
    for c in range(8):
        k.ds_write(A[0]+4*c, 4, V_WG, LDS_W + c*4096)
    if "dma" in sys.argv:
        k.v2("v_xor_b32", T0, "32", V_XOFF)
        k.wait_tag("xdma")
        for j in range(2):
            for s in range(6):
                k.ds_read(XP+24*j+4*s, 4, (V_XOFF, T0)[s & 1], j*1536 + (s >> 1)*64)
    k.wait_all_lgkm()
    k.barrier()
    stamp(k, 2)
    if PROF:
        k.wait_all_vm()
        stamp(k, 3)
    r = Rec(); wf = WFrag(r)
    lnp = ln_stats2(r)
    stage_front(r, wf, lnp)
    vgemm_ct(r, wf, 0, A[1], A[3])
    SA = [A[5], A[6]]
    for s in range(6):
        for j in range(2):
            r.mfma(SA[j], HH+24*j+4*s, Gop(j, s), None if s == 0 else SA[j])
    vgemm_ct(r, wf, 1, A[7], A[3])
    PT = A[4]
    for j in range(2):
        S = SA[j]
        e = [T0+0, T0+1, T0+2, T0+3]; m = T0+4; sm = T0+5
        for q in range(4):
            r.cndmask(e[q], S+q, S+4+q, S_M1)
            r.cndmask(e[q], e[q], S+8+q, S_M2)
            r.cndmask(e[q], e[q], S+12+q, S_M3)
        r.v3("v_max3_f32", m, e[0], e[1], e[2])
        r.v2("v_max_f32", m, m, e[3])
        for q in range(4): r.v2("v_sub_f32", e[q], e[q], m)
        for q in range(4): r.v1("v_exp_f32", e[q], e[q], kind="trans")
        r.v2("v_add_f32", sm, e[0], e[1])
        r.v2("v_add_f32", m, e[2], e[3])
        r.v2("v_add_f32", sm, sm, m)
        r.v1("v_rcp_f32", sm, sm, kind="trans")
        for q in range(4): r.v2("v_mul_f32", e[q], e[q], sm)
        r.pack(e[0], e[0], e[1])
        r.pack(e[1], e[2], e[3])
        for a in range(4):
            r.cndmask(PT+8*j+2*a, "0", e[0], S_MV[a])
            r.cndmask(PT+8*j+2*a+1, "0", e[1], S_MV[a])
    vgemm_ct(r, wf, 2, A[0], A[2])
    VV = [A[1], A[7], A[0]]
    for c in range(8):
        if 'now' not in ABL: r.buf_load(HH+4*c, 4, V_WG, SRD_W, S_WOFF[c], 0)
    for f in range(4):
        r.buf_load(WF+4*f, 4, V_WRD, SRD_W, S_WOFF[8], f*1024)
    ID = HH+32
    ident(r, ID)
    OA = [A[5], A[6], A[3], A[2]]
    n = 0
    for ct in range(3):
        for j in range(2):
            acc = OA[n % 4]; n += 1
            if "vres" in sys.argv:
                for i in range(8):
                    r.v2("v_lshlrev_b32", acc+2*i, "16", XP+24*j+8*ct+i)
                    r.v2("v_and_b32", acc+2*i+1, f"s{S_HIM}", XP+24*j+8*ct+i)
            else:
                r.mfma(acc, ID, XP+24*j+8*ct, None)
                r.mfma(acc, ID+4, XP+24*j+8*ct+4, acc)
            for a in range(2):
                r.mfma(acc, VV[ct]+8*j+4*a, PT+8*j+4*a, acc)
            for i in range(8): r.pack(acc+i, acc+2*i, acc+2*i+1)
            for a in range(2): r.ds_write(acc+4*a, 4, V_XW, (2*ct+a)*1024 + 128*j)
    if PR == "R1": stamp(k, 0, True)
    e1 = r.emit(k, not NOSCHED, stamps=[90,92,94,96] if PR == "R1" else None)
    if PR == "R1": stamp(k, 5, True)
    k.wait_all_lgkm()
    k.barrier()
    stamp(k, 4)
    k.salu(f"s_cmp_eq_u32 s{S_MODE}, 0")
    k.salu("s_cbranch_scc1 L_Ttail")
    k.label("L_R2")
    r = Rec()
    for j in range(2):
        for s in range(6):
            r.ds_read(XP+24*j+4*s, 4, V_XR, j*6144 + s*1024)
    for c in range(8):
        r.ds_write(HH+4*c, 4, V_WG, LDS_W + c*4096)
    lnp = ln_stats2(r)
    e2 = r.emit(k, not NOSCHED)
    k.wait_all_lgkm()
    k.barrier()
    if "l2pf" in sys.argv:
        k.wait_all_vm()
        k.salu(f"s_add_u32 s87, s2, 512")
        k.salu(f"s_cmp_ge_u32 s87, 784")
        k.salu("s_cbranch_scc1 L_nopf")
        k.salu(f"s_sub_u32 s87, s87, {NS}")
        k.salu(f"s_mul_i32 s88, s87, 2341")
        k.salu(f"s_lshr_b32 s88, s88, 16")
        k.salu(f"s_mul_i32 s89, s88, 28")
        k.salu(f"s_sub_u32 s89, s87, s89")
        k.salu(f"s_mul_i32 s88, s88, {8*ROW}")
        k.salu(f"s_mul_i32 s89, s89, 1536")
        k.salu(f"s_add_u32 s88, s88, s89")
        k.salu(f"s_mul_i32 s89, s{S_WAVE}, {2*ROW}")
        k.salu(f"s_add_u32 s88, s88, s89")
        k.salu(f"s_mov_b32 s84, -1"); k.salu(f"s_mov_b32 s85, 0")
        p1, p2, tt_ = T0, T0+1, T0+2
        k.v2("v_add_u32", p1, "0x400", V_WRD)
        k.v2("v_add_u32", tt_, str(ROW-512), V_WRD)
        k.cndmask(p1, tt_, p1, 84)
        k.v2("v_add_u32", p2, str(ROW+512), V_WRD)
        k.salu(f"s_mul_i32 s86, s{S_WAVE}, 12288")
        k.salu(f"s_add_u32 s86, s86, {LDS_X}")
        for tt in range(4):
            for p, pr in enumerate((V_WRD, p1, p2)):
                k.salu(f"s_add_u32 m0, s86, {0 if 'cst' in sys.argv else tt*3072 + p*1024}")
                k.nop(1)
                k.raw(f"buffer_load_dwordx4 {vr(pr)}, {sr(SRD_X,4)}, s88 offen lds")
            if tt < 3:
                k.salu(f"s_add_u32 s88, s88, {T_STRIDE}")
        k.label("L_nopf")
        k.nop(2)
    if "cst" in sys.argv:
        k.salu(f"s_mul_i32 s86, s{S_WAVE}, 12288")
        k.salu(f"s_add_u32 s86, s86, {LDS_X}")
        k.salu(f"s_mov_b32 s84, s{S_OO0}")
        k.salu(f"s_add_u32 s85, s{S_OO0}, {2*ROW}")
        k.salu(f"s_mov_b32 s88, s{S_OO1}")
        k.salu(f"s_add_u32 s89, s{S_OO1}, {2*ROW}")
        k.salu(f"s_mov_b32 s90, -1"); k.salu(f"s_mov_b32 s91, 0")
    r = Rec(); wf = WFrag(r)
    stage_front(r, wf, lnp)
    SB = [[A[1], A[3]], [A[7], A[6]]]
    def sgemm(qt):
        for s in range(6):
            for kt in range(2):
                d = SB[qt][kt]
                r.mfma(d, HH+24*kt+4*s, Gop(qt, s), None if s == 0 else d)
    def softmax(qt):
        S = [SB[qt][0]+i for i in range(16)] + [SB[qt][1]+i for i in range(16)]
        m, t, sm, sm2 = T0+4*qt, T0+1+4*qt, T0+2+4*qt, T0+3+4*qt
        r.v3("v_max3_f32", m, S[0], S[1], S[2])
        r.v3("v_max3_f32", t, S[3], S[4], S[5])
        for i in range(6, 30, 4):
            r.v3("v_max3_f32", m, m, S[i], S[i+1])
            r.v3("v_max3_f32", t, t, S[i+2], S[i+3])
        r.v3("v_max3_f32", m, m, S[30], S[31])
        r.v2("v_max_f32", m, m, t)
        r.v1("v_mov_b32", t, m)
        r.swap32(m, t)
        r.v2("v_max_f32", m, m, t)
        for i in range(32):
            r.v2("v_sub_f32", S[i], S[i], m)
            r.v1("v_exp_f32", S[i], S[i], kind="trans")
        r.v2("v_add_f32", sm, S[0], S[1])
        r.v2("v_add_f32", sm2, S[2], S[3])
        for i in range(4, 32, 2):
            r.v2("v_add_f32", sm, sm, S[i])
            r.v2("v_add_f32", sm2, sm2, S[i+1])
        r.v2("v_add_f32", sm, sm, sm2)
        r.v1("v_mov_b32", t, sm)
        r.swap32(sm, t)
        r.v2("v_add_f32", sm, sm, t)
        r.v1("v_rcp_f32", sm, sm, kind="trans")
        for i in range(16):
            r.v2("v_mul_f32", S[2*i], S[2*i], sm)
            r.v2("v_mul_f32", S[2*i+1], S[2*i+1], sm)
            r.pack(SB[qt][0]+i, S[2*i], S[2*i+1])
    sgemm(0)
    vgemm_ct(r, wf, 0, A[5], A[6])
    sgemm(1)
    if 'nosm' not in ABL: softmax(0)
    vgemm_ct(r, wf, 1, A[0], A[2])
    if 'nosm' not in ABL: softmax(1)
    vgemm_ct(r, wf, 2, A[4], A[2])
    VV = [A[5], A[0], A[4]]
    ID = HH+32
    ident(r, ID)
    OA = [A[3], A[2], A[6], HH, HH+16]
    if "cst" in sys.argv:
        OA = [A[3], A[2], A[6]]
        RB = [HH, HH+24]
        CW0, CW1 = V_OOFF, T0
        CR = [T0+1, T0+2, T0+3]
        CG = [V_WRD, T0+4, T0+5]
        S_CO = [84, 85, 88, 89]
        tq, tc = T0+6, T0+7
        r.v2("v_and_b32", tq, "31", V_LANE)
        r.v2("v_mul_u32_u24", CW0, "0xc0", tq)
        r.valu(f"v_bfe_u32 {vr(tq)}, {vr(V_LANE)}, 1, 2", w=[tq], r=[V_LANE])
        r.v2("v_lshrrev_b32", tc, "5", V_LANE)
        r.v2("v_xor_b32", tq, tq, tc)
        r.v2("v_lshlrev_b32", tq, "4", tq)
        r.v2("v_add_u32", CW0, CW0, tq)
        r.v2("v_add_u32", CW0, "s86", CW0)
        r.v2("v_xor_b32", CW1, "32", CW0)
        for p in range(3):
            d = CR[p]
            r.v2("v_add_u32", tq, str(64*p), V_LANE)
            r.v2("v_mul_u32_u24", tc, "0xaaab", tq)
            r.v2("v_lshrrev_b32", tc, "19", tc)
            r.v2("v_mul_u32_u24", d, "12", tc)
            r.v2("v_sub_u32", tq, tq, d)
            r.valu(f"v_bfe_u32 {vr(d)}, {vr(tc)}, 1, 2", w=[d], r=[tc])
            r.v2("v_xor_b32", tq, tq, d)
            r.v2("v_lshlrev_b32", tq, "4", tq)
            r.v2("v_mul_u32_u24", d, "0xc0", tc)
            r.v2("v_add_u32", d, d, tq)
            r.v2("v_add_u32", d, "s86", d)
        r.v2("v_add_u32", CG[1], "0x400", V_WRD)
        r.v2("v_add_u32", tq, str(ROW-512), V_WRD)
        r.cndmask(CG[1], tq, CG[1], 90)
        r.v2("v_add_u32", CG[2], str(ROW+512), V_WRD)
    n = 0
    for qt in range(2):
        for ct in range(3):
            acc = OA[n % len(OA)]; n += 1
            if "vres" in sys.argv:
                for i in range(8):
                    r.v2("v_lshlrev_b32", acc+2*i, "16", XP+24*qt+8*ct+i)
                    r.v2("v_and_b32", acc+2*i+1, f"s{S_HIM}", XP+24*qt+8*ct+i)
            else:
                r.mfma(acc, ID, XP+24*qt+8*ct, None)
                r.mfma(acc, ID+4, XP+24*qt+8*ct+4, acc)
            for kt in range(2):
                for a in range(2):
                    r.mfma(acc, VV[ct]+8*kt+4*a, SB[qt][0]+8*kt+4*a, acc)
            for i in range(8): r.pack(acc+i, acc+2*i, acc+2*i+1)
            if "cst" in sys.argv:
                for a in range(2):
                    r.ds_write(acc+4*a, 4, (CW0, CW1)[a], 1024 + ct*64, xw=[("L", 2*ct+a)])
                if ct == 2:
                    for i in range(6):
                        d = RB[qt] + 4*i
                        r.ds_read(d, 4, CR[i % 3], 1024 + (i // 3)*3072, xr=[("L", z) for z in range(6)])
                        r.buf_store(d, 4, CG[i % 3], SRD_O, S_CO[2*qt + i // 3], 0)
            else:
              for a in range(2):
                if 'nostore' not in ABL or (ct==0 and a==0): r.buf_store(acc+4*a, 4, V_OOFF, SRD_O, S_OO0+qt, 32*(2*ct+a))
    if PR == "R3": stamp(k, 0, True)
    e3 = r.emit(k, not NOSCHED, stamps=[90,92,94,96] if PR == "R3" else None)
    if PR == "R3": stamp(k, 5, True)
    if PROF:
        k.wait_all_vm()
        stamp(k, 5)
        k.raw("s_memrealtime s[100:101]")
        k.raw("s_waitcnt lgkmcnt(0)")
        for i in range(18):
            k.raw(f"v_writelane_b32 v20, s{84+i}, {i}")
        k.raw(f"s_lshl_b32 s80, s2, 2")
        k.raw(f"s_add_u32 s80, s80, s{S_WAVE}")
        k.raw(f"s_lshl_b32 s80, s80, 7")
        k.raw(f"s_add_u32 s80, s80, 0x100000")
        k.raw(f"v_lshlrev_b32 v21, 2, v{V_LANE}")
        k.raw(f"v_add_u32 v21, s80, v21")
        k.raw(f"v_cmp_gt_u32 vcc, 18, v{V_LANE}")
        k.raw("s_and_saveexec_b64 s[82:83], vcc")
        k.raw("global_store_dword v21, v20, s[10:11]")
    if "l2pf" in sys.argv: k.raw("s_waitcnt vmcnt(12)")
    k.label("L_main_done")
    k.raw("s_endpgm")
    k.label("L_Ttail")
    k.raw(f"s_mul_i32 s{S_TMP}, s{S_WAVE}, 12288")
    k.raw(f"s_add_u32 s{S_TMP}, s{S_TMP}, {LDS_X}")
    k.raw(f"v_add_u32 v{T0}, s{S_TMP}, v{V_WRD}")
    for i in range(12):
        k.raw(f"ds_read_b128 v[{XP+4*i}:{XP+4*i+3}], v{T0} offset:{i*1024}")
    k.raw("s_waitcnt lgkmcnt(0)")
    for i in range(12):
        if i % 4 == 0 and i > 0:
            k.raw(f"s_add_u32 s{S_X1}, s{S_X1}, 4096")
        k.raw(f"buffer_store_dwordx4 v[{XP+4*i}:{XP+4*i+3}], v{V_WRD}, s[{SRD_W}:{SRD_W+3}], s{S_X1} offen offset:{(i%4)*1024}" + (" sc0 sc1" if "wt" in sys.argv else ""))
    k.raw("s_waitcnt vmcnt(0)")
    k.raw("s_barrier")
    k.raw(f"s_cmp_eq_u32 s{S_WAVE}, 0")
    k.raw("s_cbranch_scc0 L_main_done")
    if "wt" not in sys.argv:
        k.raw("buffer_wbl2 sc1")
        k.raw("s_waitcnt vmcnt(0)")
    k.raw(f"v_mov_b32 v{T0}, s{S_SLOT}")
    k.raw(f"v_mov_b32 v{T0+1}, 1")
    k.raw(f"v_cmp_eq_u32 vcc, 0, v{V_LANE}")
    k.raw("s_and_saveexec_b64 s[82:83], vcc")
    k.raw(f"global_store_byte v{T0}, v{T0+1}, s[8:9] sc0 sc1")
    k.raw("s_endpgm")
    k.label("L_Shead")
    for c in range(8):
        k.raw(f"buffer_load_dwordx4 v[{HH+4*c}:{HH+4*c+3}], v{V_WG}, s[{SRD_W}:{SRD_W+3}], s{S_WOFF[c]} offen")
    for f in range(4):
        k.raw(f"buffer_load_dwordx4 v[{WF+4*f}:{WF+4*f+3}], v{V_WRD}, s[{SRD_W}:{SRD_W+3}], s{S_WOFF[8]} offen offset:{f*1024}")
    k.raw(f"v_mov_b32 v{T0}, s{S_SLOT}")
    k.label("L_Spoll")
    k.raw(f"global_load_ubyte v{T0+1}, v{T0}, s[8:9] sc0 sc1")
    k.raw("s_waitcnt vmcnt(0)")
    k.raw(f"v_readfirstlane_b32 s{S_TMP}, v{T0+1}")
    k.raw("s_nop 3")
    k.raw(f"s_cmp_eq_u32 s{S_TMP}, 0")
    k.raw("s_cbranch_scc0 L_Sgo")
    k.raw("s_sleep 8")
    k.raw("s_branch L_Spoll")
    k.label("L_Sgo")
    k.raw("buffer_inv sc1")
    k.raw("s_waitcnt vmcnt(0)")
    k.raw(f"s_mul_i32 s{S_TMP}, s{S_WAVE}, 12288")
    k.raw(f"s_add_u32 s{S_TMP}, s{S_TMP}, {LDS_X}")
    for i in range(12):
        k.raw(f"s_add_u32 m0, s{S_TMP}, {i*1024}")
        k.raw(f"s_add_u32 s{S_TMP+1}, s{S_X1}, {i*1024}")
        k.raw(f"buffer_load_dwordx4 v{V_WRD}, s[{SRD_W}:{SRD_W+3}], s{S_TMP+1} offen" + (" sc0 sc1" if "wt" in sys.argv else "") + " lds")
    k.raw("s_waitcnt vmcnt(0)")
    k.raw("s_branch L_R2")
    print("main counts:", k.counts, "est cycles", e1, e2, e3, file=sys.stderr)
    return k.text()

def main():
    s = HEADER + gen_fold() + gen_main()
    s += '.section .rodata,"a"\n.p2align 6\n' + kd("fold_kernel", 144, 40) + ".p2align 6\n" + kd(NAME + "_kernel", 256, 102)
    out = sys.argv[1] if len(sys.argv) > 1 else f"cdna_kernels/{NAME}.s"
    open(out, "w").write(s)

main()
```
